```python
import torch

def _softmax(x, axis=-1):
    return torch.softmax(x, dim=axis)
def _gelu(x):
    return torch.nn.functional.gelu(x, approximate="tanh")
def _silu(x):
    return torch.nn.functional.silu(x)
def _sigmoid(x):
    return torch.sigmoid(x)
def _layernorm(x, axis=-1, eps=1e-5):
    m = x.mean(dim=axis, keepdim=True)
    v = x.var(dim=axis, keepdim=True, unbiased=False)
    return (x - m) / torch.sqrt(v + eps)
def _scatter_add(tgt, idx, src, axis=0):
    return tgt.clone().index_add_(axis, idx, src)
def _segment_sum(src, seg, n):
    out = torch.zeros((n,) + src.shape[1:], dtype=src.dtype)
    return out.index_add_(0, seg, src)
def _pad(x, pw):
    flat = tuple(v for pair in reversed(pw) for v in pair)
    return torch.nn.functional.pad(x, flat)

kernel_name = 'recurrent_scan__spectral_fnet__glu_gated_bilinear__prompt'

def setup_inputs():

    _w = (lambda a: (lambda t: t.to(torch.bfloat16) if t.is_floating_point() else t)(torch.as_tensor(a)))
    def _A_setup():
        B, S, D = 1, 2048, 1024
        ns = torch.arange(S)[:, None] * torch.arange(S)[None, :]
        nd = torch.arange(D)[:, None] * torch.arange(D)[None, :]
        Ws_re = torch.cos(-2.0 * torch.pi * ns / S).to(float)
        Ws_im = torch.sin(-2.0 * torch.pi * ns / S).to(float)
        Wd_re = torch.cos(-2.0 * torch.pi * nd / D).to(float)
        Wd_im = torch.sin(-2.0 * torch.pi * nd / D).to(float)
        return {
            "x": _w((lambda *s: torch.randn(*s, dtype=torch.bfloat16) * 0.05)(B, S, D)),
            "dft_seq_re": _w(Ws_re),
            "dft_seq_im": _w(Ws_im),
            "dft_hid_re": _w(Wd_re),
            "dft_hid_im": _w(Wd_im),
        }
    _A_in = _A_setup()

    def _B_setup():
        B, S, D, F = 1, 2048, 1024, 3584
        return {
            "x": _w((lambda *s: torch.randn(*s, dtype=torch.bfloat16) * 0.05)(B, S, D)),
            "w_gate": _w((lambda *s: torch.randn(*s, dtype=torch.bfloat16) * 0.05)(D, F) * (D ** -0.5)),
            "w_up": _w((lambda *s: torch.randn(*s, dtype=torch.bfloat16) * 0.05)(D, F) * (D ** -0.5)),
            "w_down": _w((lambda *s: torch.randn(*s, dtype=torch.bfloat16) * 0.05)(F, D) * (F ** -0.5)),
        }
    _B_in = _B_setup()

    return {
        "A_x": _A_in["x"],
        "A_dft_seq_re": _A_in["dft_seq_re"],
        "A_dft_seq_im": _A_in["dft_seq_im"],
        "A_dft_hid_re": _A_in["dft_hid_re"],
        "A_dft_hid_im": _A_in["dft_hid_im"],
        "B_x": _B_in["x"],
        "B_w_gate": _B_in["w_gate"],
        "B_w_up": _B_in["w_up"],
        "B_w_down": _B_in["w_down"],
    }

def reference(A_x, A_dft_seq_re, A_dft_seq_im, A_dft_hid_re, A_dft_hid_im, B_x, B_w_gate, B_w_up, B_w_down):
    def _A_ref(x, dft_seq_re, dft_seq_im, dft_hid_re, dft_hid_im):
        a = torch.einsum("bsd,ed->bse", x, dft_hid_re)
        b = torch.einsum("bsd,ed->bse", x, dft_hid_im)
        y = torch.einsum("ts,bse->bte", dft_seq_re, a) - torch.einsum("ts,bse->bte", dft_seq_im, b)
        return y

    def _B_ref(x, w_gate, w_up, w_down):
        g = torch.einsum("bsd,df->bsf", x, w_gate)
        u = torch.einsum("bsd,df->bsf", x, w_up)
        h = g * u
        return torch.einsum("bsf,fd->bsd", h, w_down)

    x = A_x
    xn = _layernorm(x, axis=-1)
    s = _A_ref(xn, A_dft_seq_re, A_dft_seq_im, A_dft_hid_re, A_dft_hid_im)
    g = _silu(_B_ref(xn, B_w_gate, B_w_up, B_w_down))
    return x + s * g
```

```python
class Asm:
    def __init__(self):
        self.lines = []
    def __call__(self, s):
        for l in s.split('\n'):
            l = l.strip()
            if l:
                if l.endswith(':') or l.startswith('.') or l.startswith(';'):
                    self.lines.append(l)
                else:
                    self.lines.append('    ' + l)
    def text(self):
        return '\n'.join(self.lines) + '\n'

def vr(a, n=1):
    return f'v{a}' if n == 1 else f'v[{a}:{a+n-1}]'
def ar(a, n=1):
    return f'a{a}' if n == 1 else f'a[{a}:{a+n-1}]'
def sr(a, n=1):
    return f's{a}' if n == 1 else f's[{a}:{a+n-1}]'

def interleave(A, mfmas, fillers):
    for f in fillers.get(-1, []):
        A(f)
    for i, m in enumerate(mfmas):
        A(m)
        for f in fillers.get(i, []):
            A(f)

def spread(items, slots):
    d = {}
    n = len(items); m = len(slots)
    for i, it in enumerate(items):
        s = slots[min(m - 1, (i * m) // n)] if n > m else slots[i]
        d.setdefault(s, []).append(it)
    return d

def merge(*ds):
    out = {}
    for d in ds:
        for k, v in d.items():
            out.setdefault(k, []).extend(v)
    return out

def kd(name, vgpr, sgpr, accum, extra=''):
    return f'''.section .rodata,"a"
.p2align 6
.amdhsa_kernel {name}
  .amdhsa_next_free_vgpr {vgpr}
  .amdhsa_next_free_sgpr {sgpr}
  .amdhsa_accum_offset {accum}
  .amdhsa_group_segment_fixed_size 0
  .amdhsa_kernarg_size 96
  .amdhsa_user_sgpr_count 2
  .amdhsa_user_sgpr_kernarg_segment_ptr 1
  .amdhsa_system_sgpr_workgroup_id_x 1
{extra}.end_amdhsa_kernel
'''
def head(name):
    return f'''.text
.globl {name}
.p2align 8
.type {name},@function
{name}:
'''
def srd(A, d, lo, hi, nbytes):
    A(f's_mov_b32 s{d}, s{lo}')
    A(f's_mov_b32 s{d+1}, s{hi}')
    A(f's_mov_b32 s{d+2}, {nbytes}')
    A(f's_mov_b32 s{d+3}, 0x00020000')
```

```python
from asmlib import *
from k0 import WS_X, XPLANE, WS_MS, WS_MD
from g3b import stamp
WS_PF = 20 << 20
WS_QF = 23 << 20
PSTR = 1280
USTR = 592
UP = 80*USTR

def gen_dft(A, name, opt):
    A('s_lshr_b32 s25, s27, 1')
    A('s_and_b32 s26, s27, 1')
    A('s_lshl_b32 s26, s26, 2')
    A('s_add_u32 s26, s26, s3')
    A('s_sub_u32 s26, s26, 28')
    A('s_cmp_ge_u32 s26, 7')
    A(f's_cbranch_scc1 {name}_spare')
    A('s_and_b32 s28, s25, 1')
    A('s_lshr_b32 s29, s25, 1')
    A('s_and_b32 s30, s24, 1')
    A('s_lshr_b32 s31, s24, 1')
    A(f's_mul_i32 s34, s24, 288')
    for p in range(9):
        A(f'v_add_u32 v2, {64*p}, v1')
        A('v_mul_u32_u24 v3, 3641, v2')
        A('v_lshrrev_b32 v3, 16, v3')
        A('v_mul_u32_u24 v4, 18, v3')
        A('v_sub_u32 v4, v2, v4')
        A('v_and_b32 v5, 19, v3')
        A('v_bfe_u32 v6, v3, 2, 1')
        A('v_lshl_add_u32 v5, v6, 3, v5')
        A('v_bfe_u32 v6, v3, 3, 1')
        A('v_lshl_add_u32 v5, v6, 2, v5')
        A('v_mul_u32_u24 v5, 1152, v5')
        A('v_lshl_add_u32 v5, v4, 4, v5')
        A(f'v_add_u32 v5, s34, v5')
        A(f'v_add_u32 v{8+p}, {4096 - (p&3)*1024}, v5')
    A('v_and_b32 v2, 15, v1')
    A('v_lshrrev_b32 v4, 4, v1')
    A('v_lshlrev_b32 v20, 4, v1')
    A('v_add_u32 v21, 4096, v20')
    A('v_add_u32 v19, 8192, v20')
    A('v_bfe_u32 v3, v1, 2, 3')
    A('v_lshrrev_b32 v5, 5, v1')
    A('v_lshl_add_u32 v3, v5, 4, v3')
    A('v_mul_u32_u24 v3, 288, v3')
    A('v_and_b32 v5, 3, v1')
    A('v_lshl_add_u32 v3, v5, 3, v3')
    A('s_mul_i32 s35, s24, 40960')
    A('v_add_u32 v22, s35, v3')
    A(f'v_mul_u32_u24 v3, {USTR}, v2')
    A('v_lshl_add_u32 v24, v4, 4, v3')
    A(f'v_add_u32 v25, {UP}, v24')
    A(f's_mul_i32 s34, s31, {UP}')
    A('v_add_u32 v3, s34, v3')
    A('v_lshl_add_u32 v23, v4, 3, v3')
    A('s_mul_i32 s34, s30, 288')
    A('v_add_u32 v23, s34, v23')
    A('s_waitcnt lgkmcnt(0)')
    A(f's_mul_i32 s34, s25, {XPLANE}')
    A(f's_add_u32 s34, s34, {WS_X - 4096}')
    A('s_add_u32 s16, s4, s34')
    A('s_addc_u32 s17, s5, 0')
    A(f's_mov_b32 s18, {XPLANE + 4096}')
    A('s_mov_b32 s19, 0x00020000')
    A('s_mul_i32 s34, s25, 7')
    A('s_add_u32 s34, s34, s26')
    A(f's_mul_i32 s34, s34, {85*1024}')
    A(f's_add_u32 s34, s34, {WS_MS}')
    A('s_add_u32 s20, s4, s34')
    A('s_addc_u32 s21, s5, 0')
    A(f's_mov_b32 s22, {85*1024}')
    A('s_mov_b32 s23, 0x00020000')
    A('s_lshl_b32 s34, s29, 2')
    A('s_add_u32 s34, s34, s24')
    A(f's_mul_i32 s34, s34, {90*1024}')
    A(f's_add_u32 s34, s34, {WS_MD}')
    A('s_add_u32 s8, s4, s34')
    A('s_addc_u32 s9, s5, 0')
    A(f's_mov_b32 s10, {90*1024}')
    A('s_mov_b32 s11, 0x00020000')
    XF = [64, 100]; MR = 136
    NA = 17
    def loadsA(t):
        L = []
        for p in range(9):
            pre = [f's_add_u32 m0, s35, {(t % 4)*9216 + (p >> 2)*4096}'] if (p & 3) == 0 else []
            if p == 0: pre = [f's_mov_b32 s36, {t*32*1152}'] + pre
            L.append((pre, f'buffer_load_dwordx4 v{8+p}, s[16:19], s36 offen offset:{(p&3)*1024} lds'))
        for j in range(5):
            L.append(([f's_mov_b32 s37, {t*5120}'] if j == 0 else [], f'buffer_load_dwordx4 {vr(MR + (t % 4)*20 + 4*j, 4)}, v{20 + (j >> 2)}, s[20:23], s37 offen offset:{(j & 3)*1024}'))
        return L
    def readsA(t):
        b = t & 1
        L = []
        for i in range(9):
            for h in range(2):
                L.append(f'ds_read_b64_tr_b16 {vr(XF[b]+4*i+2*h,2)}, v22 offset:{(t % 4)*9216 + h*2304 + i*32}')
        return L
    def accr(i, j): return ar((i*5 + j)*4, 4)
    for t in range(3):
        for pre, ins in loadsA(t):
            for q in pre: A(q)
            if pre: A('s_nop 0')
            A(ins)
    A('s_waitcnt vmcnt(33)')
    for r in readsA(0): A(r)
    for t in range(NA):
        later = min(NA - 1, t + 2) - t
        n = 0 if later == 0 else 5 + 14*(later - 1)
        A(f's_waitcnt lgkmcnt(0) vmcnt({n})')
        F = {}
        def add(s, ins): F.setdefault(s, []).append(ins)
        if t + 1 < NA:
            for k, r in enumerate(readsA(t + 1)): add(2*k, r)
        if t + 3 < NA:
            for k, (pre, ins) in enumerate(loadsA(t + 3)):
                for q in pre: add(3*k, q)
                add(3*k + 1, ins)
        M = [f'v_mfma_f32_16x16x32_bf16 {accr(i,j)}, {vr(XF[t&1]+4*i,4)}, {vr(MR+(t%4)*20+4*j,4)}, {accr(i,j) if t else 0}' for i in range(9) for j in range(5)]
        interleave(A, M, F)
    if opt.get('stamp'): stamp(A, 1)
    DR = 64
    UF = [184 + 4*k for k in range(18)] + [32, 36]
    def loadsB(u):
        L = []
        for n in range(10):
            if n == 0: L.append(f's_mov_b32 s37, {u*10240}')
            L.append(f'buffer_load_dwordx4 {vr(DR + (u % 3)*40 + 4*n, 4)}, v{[20, 21, 19][n >> 2]}, s[8:11], s37 offen offset:{(n & 3)*1024}')
        return L
    A('s_barrier')
    for u in range(2):
        for q in loadsB(u): A(q)
    A('s_nop 7')
    for i in range(9):
        for j in range(5):
            o = 184 + ((i*5 + j) & 3)*8
            for r in range(4): A(f'v_accvgpr_read_b32 v{o+r}, a{(i*5+j)*4+r}')
            A(f'v_cvt_pk_bf16_f32 v{o+4}, v{o}, v{o+1}')
            A(f'v_cvt_pk_bf16_f32 v{o+5}, v{o+2}, v{o+3}')
            A(f'ds_write_b64 v23, {vr(o+4,2)} offset:{j*16*USTR + i*32}')
    A('s_waitcnt lgkmcnt(0)')
    A('s_barrier')
    def readsB(u):
        return [f'ds_read_b128 {vr(UF[(u&1)*10 + pe*5 + j],4)}, v{24+pe} offset:{j*16*USTR + 64*u}' for pe in range(2) for j in range(5)]
    for r in readsB(0): A(r)
    NB = 9
    for u in range(NB):
        n = 10 if u + 1 < NB else 0
        A(f's_waitcnt lgkmcnt(0) vmcnt({n})')
        F = {}
        def add(s, ins): F.setdefault(s, []).append(ins)
        if u + 1 < NB:
            for k, r in enumerate(readsB(u + 1)): add(2*k, r)
        if u + 2 < NB:
            for k, q in enumerate(loadsB(u + 2)): add(4*k + 1, q)
        M = [f'v_mfma_f32_16x16x32_bf16 {accr(n,j)}, {vr(DR+(u%3)*40+4*n,4)}, {vr(UF[(u&1)*10 + (n&1)*5 + j],4)}, {accr(n,j) if u else 0}' for n in range(10) for j in range(5)]
        interleave(A, M, F)
    if opt.get('stamp'): stamp(A, 2)
    A(f's_mul_i32 s34, s29, {WS_QF - WS_PF}')
    A(f's_add_u32 s34, s34, {WS_PF}')
    A('s_add_u32 s16, s4, s34')
    A('s_addc_u32 s17, s5, 0')
    A(f's_mov_b32 s18, {1025*PSTR}')
    A('s_mul_i32 s34, s26, 160')
    A('s_add_u32 s34, s34, s28')
    A(f's_mul_i32 s34, s34, {PSTR}')
    A('s_mul_i32 s36, s24, 320')
    A('s_add_u32 s34, s34, s36')
    A('v_and_b32 v2, 15, v1')
    A(f'v_mul_u32_u24 v2, {2*PSTR}, v2')
    A('v_lshrrev_b32 v4, 4, v1')
    A('v_lshl_add_u32 v2, v4, 4, v2')
    A('s_nop 7')
    k = 0
    for j in range(5):
        for i in range(5):
            o = 64 + (k & 3)*12; k += 1
            for r in range(4):
                A(f'v_accvgpr_read_b32 v{o+4+r}, a{((2*i)*5+j)*4+r}')
                A(f'v_accvgpr_read_b32 v{o+8+r}, a{((2*i+1)*5+j)*4+r}')
            for r in range(4):
                A(f'v_cvt_pk_bf16_f32 v{o+r}, v{o+4+r}, v{o+8+r}')
            A(f'buffer_store_dwordx4 {vr(o,4)}, v2, s[16:19], s34 offen offset:{64*i}' + (' sc1' if opt.get('sc1') else ''))
        A(f's_add_u32 s34, s34, {32*PSTR}')
```

```python
from asmlib import *

WS_XN = 0
WS_H = 4 << 20
WS_STAMP = 200 << 20

def stamp_out(A, nst):
    A('s_waitcnt lgkmcnt(0)')
    A(f's_add_u32 s80, s4, {WS_STAMP}')
    A('s_addc_u32 s81, s5, 0')
    A('s_mov_b32 s82, 0x100000')
    A('s_mov_b32 s83, 0x00020000')
    A('s_lshl_b32 s3, s2, 3')
    A('s_add_u32 s3, s3, s24')
    A('s_lshl_b32 s3, s3, 6')
    for q in range(8):
        A(f'v_mov_b32 v{8+q}, s{40+q}')
        A(f'v_mov_b32 v{16+q}, s{60+q}')
    A('v_mov_b32 v2, s3')
    A('s_mov_b64 exec, 1')
    for q in range(4):
        A(f'buffer_store_dwordx4 v[{8+4*q}:{11+4*q}], v2, s[80:83], 0 offen offset:{16*q}')
def stamp(A, i):
    A(f's_memtime s[{40+2*i}:{41+2*i}]')
    A(f's_memrealtime s[{60+2*i}:{61+2*i}]')

def gen_g3(A, name, opt):
    st = opt.get('stamp', False)
    A(head(name))
    A('s_cmp_ge_u32 s2, 256')
    A(f's_cbranch_scc1 {name}_done')
    if st: stamp(A, 0)
    A('s_load_dwordx2 s[4:5], s[0:1], 88')
    A('s_load_dwordx4 s[8:11], s[0:1], 48')
    A('v_lshrrev_b32 v1, 6, v0')
    A('s_and_b32 s27, s2, 7')
    A('v_readfirstlane_b32 s24, v1')
    A('s_lshr_b32 s3, s2, 3')
    A('s_cmp_ge_u32 s3, 28')
    A(f's_cbranch_scc1 {name}_done')
    A('s_and_b32 s25, s27, 1')
    A('s_lshl_b32 s25, s25, 2')
    A('s_and_b32 s26, s3, 3')
    A('s_add_u32 s25, s25, s26')
    A('s_lshr_b32 s26, s27, 1')
    A('s_mul_i32 s26, s26, 7')
    A('s_lshr_b32 s3, s3, 2')
    A('s_add_u32 s26, s26, s3')
    A('v_and_b32 v1, 63, v0')
    A('s_waitcnt lgkmcnt(0)')
    A('s_lshl_b32 s3, s25, 19')
    A('s_add_u32 s12, s4, s3')
    A('s_addc_u32 s13, s5, 0')
    A(f's_mov_b32 s14, {256*2048}')
    A('s_mov_b32 s15, 0x00020000')
    A('s_cmp_ge_u32 s24, 2')
    A('s_cselect_b32 s16, s10, s8')
    A('s_cselect_b32 s17, s11, s9')
    A('s_lshl_b32 s3, s26, 8')
    A('s_add_u32 s16, s16, s3')
    A('s_addc_u32 s17, s17, 0')
    A(f's_sub_u32 s18, {1024*7168}, s3')
    A('s_mov_b32 s19, 0x00020000')
    A(f's_mul_i32 s20, s25, {256*7168}')
    A('s_add_u32 s20, s20, s3')
    A(f's_add_u32 s20, s20, {WS_H}')
    A('s_add_u32 s20, s20, s4')
    A('s_addc_u32 s21, s5, 0')
    A(f's_sub_u32 s22, {256*7168}, s3')
    A('s_mov_b32 s23, 0x00020000')
    A('v_lshrrev_b32 v2, 3, v1')
    A('s_lshl_b32 s3, s24, 6')
    A('v_add_u32 v2, s3, v2')
    A('v_lshlrev_b32 v2, 11, v2')
    A('v_lshrrev_b32 v3, 4, v1')
    A('v_and_b32 v4, 7, v1')
    A('v_xor_b32 v5, v4, v3')
    A('v_xor_b32 v6, 4, v5')
    A('v_lshl_add_u32 v5, v5, 4, v2')
    A('v_lshl_add_u32 v6, v6, 4, v2')
    for p in range(8):
        A(f'v_add_u32 v{8+p}, {p*16384 - (p&3)*1024}, v{5 + (p&1)}')
    A('s_and_b32 s3, s24, 1')
    A('s_lshl_b32 s3, s3, 5')
    A('v_add_u32 v2, s3, v3')
    A('s_movk_i32 s3, 7168')
    A('v_mul_lo_u32 v2, v2, s3')
    A('v_and_b32 v4, 15, v1')
    A('v_lshlrev_b32 v5, 1, v3')
    A('v_xor_b32 v4, v4, v5')
    A('v_xor_b32 v5, 8, v4')
    A('v_lshl_add_u32 v4, v4, 4, v2')
    A('v_lshl_add_u32 v5, v5, 4, v2')
    for p in range(8):
        A(f'v_add_u32 v{16+p}, {p*4*7168 - (p&3)*1024}, v{4 + ((p>>1)&1)}')
    A('s_lshl_b32 s30, s24, 13')
    A('s_lshl_b32 s31, s24, 13')
    A('s_add_u32 s31, s31, 65536')
    A('s_mov_b32 s28, 0')
    A('s_mov_b32 s29, 0')
    def dma_x():
        L = []
        for p in range(8):
            pre = []
            if p == 0: pre = ['s_mov_b32 m0, s30']
            if p == 4: pre = ['s_add_u32 m0, s30, 4096']
            L.append((pre, f'buffer_load_dwordx4 v{8+p}, s[12:15], s28 offen offset:{(p&3)*1024} lds'))
        return L
    def dma_w():
        L = []
        for p in range(8):
            pre = []
            if p == 0: pre = ['s_mov_b32 m0, s31']
            if p == 4: pre = ['s_add_u32 m0, s31, 4096']
            L.append((pre, f'buffer_load_dwordx4 v{16+p}, s[16:19], s29 offen offset:{(p&3)*1024} lds'))
        return L
    adv_x = ['s_add_u32 s28, s28, 128', 's_xor_b32 s30, s30, 0x8000']
    adv_w = [f's_add_u32 s29, s29, {64*7168}', 's_add_u32 s31, s31, 0x8000',
             f's_cmp_ge_u32 s31, {163840}', f's_cselect_b32 s3, {98304}, 0', 's_sub_u32 s31, s31, s3']
    def emit_dma(L):
        for pre, ins in L:
            for q in pre:
                A(q); A('s_nop 0')
            A(ins)
    emit_dma(dma_x()); [A(q) for q in adv_x]
    emit_dma(dma_w()); [A(q) for q in adv_w]
    emit_dma(dma_w()); [A(q) for q in adv_w]
    emit_dma(dma_x()); [A(q) for q in adv_x]
    A('s_and_b32 s3, s24, 1')
    A('s_lshl_b32 s3, s3, 7')
    A('v_and_b32 v2, 15, v1')
    A('v_add_u32 v2, s3, v2')
    A('v_lshlrev_b32 v2, 7, v2')
    A('v_lshrrev_b32 v3, 4, v1')
    A('v_bfe_u32 v4, v1, 1, 3')
    A('v_xor_b32 v3, v3, v4')
    for kk in range(2):
        A(f'v_xor_b32 v4, {4*kk}, v3')
        A(f'v_lshl_add_u32 v{24+kk}, v4, 4, v2')
    A('v_lshrrev_b32 v2, 4, v1')
    A('v_bfe_u32 v3, v1, 2, 2')
    A('v_lshl_add_u32 v2, v2, 3, v3')
    A('v_lshlrev_b32 v2, 8, v2')
    A('v_and_b32 v4, 3, v1')
    A('v_lshl_add_u32 v2, v4, 3, v2')
    A('v_bfe_u32 v4, v1, 4, 1')
    A('v_lshl_add_u32 v3, v4, 2, v3')
    A('s_lshr_b32 s3, s24, 1')
    A('s_lshl_b32 s3, s3, 2')
    A('v_xor_b32 v3, s3, v3')
    A('s_mov_b32 s33, 65536')
    for i in range(4):
        A(f'v_xor_b32 v4, {i}, v3')
        A(f'v_lshl_add_u32 v{32+i}, v4, 5, v2')
        A(f'v_add_u32 v{28+i}, s33, v{32+i}')
    for r in range(256):
        A(f'v_accvgpr_write_b32 a{r}, 0')

    WF = [64, 128]; XF = [96, 160]
    def acc(i, j):
        return ar((i*8 + j)*4, 4)
    def mf(b):
        return [f'v_mfma_f32_16x16x32_bf16 {acc(i,j)}, {vr(WF[b]+4*i,4)}, {vr(XF[b]+4*j,4)}, {acc(i,j)}' for i in range(8) for j in range(8)]
    def reads(kk, b):
        def w(i):
            off = (i >> 2)*16384 + kk*8192
            return [f'ds_read_b64_tr_b16 {vr(WF[b]+4*i,2)}, v{28+(i&3)} offset:{off}',
                    f'ds_read_b64_tr_b16 {vr(WF[b]+4*i+2,2)}, v{28+(i&3)} offset:{off+1024}']
        def x(j):
            return [f'ds_read_b128 {vr(XF[b]+4*j,4)}, v{24+kk} offset:{j*2048}']
        L = w(0)
        for j in range(8): L += x(j)
        for i in range(1, 8): L += w(i)
        return L
    A('s_waitcnt vmcnt(16)')
    A('s_barrier')
    for r in reads(0, 0): A(r)
    A('v_xor_b32 v24, 0x8000, v24')
    if st: stamp(A, 1)

    rd_slots = opt.get('rd_slots', [2*i for i in range(24)])
    wslots = opt.get('wslots', [(0, 3 + 6*i) for i in range(8)])
    xslots = opt.get('xslots', [(1, 3 + 6*i) for i in range(8)])
    barpos = opt.get('barpos', 1)
    def body(mode):
        F = [dict() for _ in range(2)]
        def add(kk, slot, ins):
            F[kk].setdefault(slot, []).append(ins)
        for kk in range(2):
            if kk == 1 and mode == 'last': continue
            nk = (kk + 1) & 1
            for r, s in zip(reads(nk, nk), rd_slots):
                add(kk, s + (barpos if kk == 1 else 0), r)
            add(kk, 53, f'v_xor_b32 v{24+nk}, 0x8000, v{24+nk}')
        if mode == 'full':
            for (pre, ins), (kk, s) in zip(dma_w(), wslots):
                for q in pre: add(kk, s - 2, q)
                add(kk, s, ins)
            for (pre, ins), (kk, s) in zip(dma_x(), xslots):
                for q in pre: add(kk, s - 2, q)
                add(kk, s, ins)
            for n, q in enumerate(adv_w): add(wslots[-1][0], 55 + n, q)
            for n, q in enumerate(adv_x): add(xslots[-1][0], 61 + n, q)
        if mode != 'last':
            add(0, 60, 's_add_u32 s33, s33, 0x8000')
            add(0, 60, f's_cmp_ge_u32 s33, 163840')
            add(0, 61, f's_cselect_b32 s33, 65536, s33')
            add(0, 62, 'v_add_u32 v28, s33, v32')
            add(0, 62, 'v_add_u32 v29, s33, v33')
            add(0, 63, 'v_add_u32 v30, s33, v34')
            add(0, 63, 'v_add_u32 v31, s33, v35')
        for kk in range(2):
            if kk == 1 and mode != 'last':
                A(f's_waitcnt lgkmcnt(0)')
                F[kk].setdefault(barpos - 1, [])
                F[kk][barpos - 1] = [f's_waitcnt vmcnt({8 if mode == "full" else 0})', 's_barrier'] + F[kk][barpos - 1]
                interleave(A, mf(kk), F[kk])
            else:
                A('s_waitcnt lgkmcnt(0)')
                interleave(A, mf(kk), F[kk])
    A('s_mov_b32 s32, 0')
    A('.p2align 6')
    A(f'{name}_loop:')
    body('full')
    A('s_add_u32 s32, s32, 1')
    A('s_cmp_lt_u32 s32, 14')
    A(f's_cbranch_scc1 {name}_loop')
    body('nodma')
    body('last')
    if st: stamp(A, 2)
    A('s_nop 15')
    A('s_and_b32 s3, s24, 1')
    A('s_lshl_b32 s3, s3, 7')
    A('v_and_b32 v2, 15, v1')
    A('v_add_u32 v2, s3, v2')
    A('s_movk_i32 s3, 7168')
    A('v_mul_lo_u32 v2, v2, s3')
    A('v_bfe_u32 v3, v1, 4, 1')
    A('v_lshl_add_u32 v2, v3, 5, v2')
    A('v_lshrrev_b32 v3, 5, v1')
    A('v_lshl_add_u32 v2, v3, 4, v2')
    A('s_lshr_b32 s3, s24, 1')
    A('s_lshl_b32 s3, s3, 7')
    A('v_add_u32 v2, s3, v2')
    A('s_mov_b32 s34, 0')
    n = 0
    for j in range(8):
        for ip in (0, 2):
            o = 64 + (n & 3)*24; n += 1
            for t in range(2):
                g0 = ((ip + t)*8 + j)*4; u0 = ((4 + ip + t)*8 + j)*4
                for r in range(4):
                    A(f'v_accvgpr_read_b32 v{o+8+t*4+r}, a{g0+r}')
                    A(f'v_accvgpr_read_b32 v{o+16+t*4+r}, a{u0+r}')
            for r in range(0, 8, 2):
                A(f'v_pk_mul_f32 {vr(o+8+r,2)}, {vr(o+8+r,2)}, {vr(o+16+r,2)}')
            for r in range(0, 8, 2):
                A(f'v_cvt_pk_bf16_f32 v{o+r//2}, v{o+8+r}, v{o+8+r+1}')
            A('s_nop 1')
            A(f'v_permlane16_swap_b32 v{o}, v{o+2}')
            A(f'v_permlane16_swap_b32 v{o+1}, v{o+3}')
            A(f'buffer_store_dwordx4 {vr(o,4)}, v2, s[20:23], s34 offen offset:{ip*32}')
        A(f's_add_u32 s34, s34, {16*7168}')
    if st:
        A('s_waitcnt vmcnt(0)')
        stamp(A, 3)
        stamp_out(A, 4)
    A(f'{name}_done:')
    A('s_endpgm')
    A(kd(name, 512, 96, 256))

if __name__ == '__main__':
    import sys, json
    opt = json.loads(sys.argv[2]) if len(sys.argv) > 2 else {}
    A = Asm()
    A('; @launch kernel=g3_kernel grid=(256,1,1) block=(256,1,1) lds=163840')
    A('.amdgcn_target "amdgcn-amd-amdhsa--gfx950"')
    gen_g3(A, 'g3_kernel', opt)
    open(sys.argv[1], 'w').write(A.text())
```

```python
from asmlib import *
from g3b import stamp, stamp_out, WS_H, WS_STAMP
from dft import WS_PF, WS_QF, PSTR

def gen_g4(A, name, opt):
    st = opt.get('stamp', False)
    D = opt.get('depth', 8)
    NS = opt.get('ns', 16)
    NK = 56
    A(head(name))
    A('s_cmp_ge_u32 s2, 256')
    A(f's_cbranch_scc1 {name}_done')
    if st: stamp(A, 0)
    A('s_load_dwordx2 s[4:5], s[0:1], 88')
    A('s_load_dwordx4 s[8:11], s[0:1], 64')
    A('s_load_dwordx2 s[6:7], s[0:1], 0')
    A('v_lshrrev_b32 v1, 6, v0')
    A('s_and_b32 s27, s2, 7')
    A('v_readfirstlane_b32 s24, v1')
    A('s_lshr_b32 s3, s2, 3')
    lr = opt.get('lr', 2)
    A(f's_and_b32 s25, s27, {(16 >> lr) - 1}')
    A(f's_lshl_b32 s25, s25, {lr}')
    A(f's_and_b32 s26, s3, {(1 << lr) - 1}')
    A('s_add_u32 s25, s25, s26')
    A(f's_lshr_b32 s26, s27, {4 - lr}')
    A(f's_lshl_b32 s26, s26, {5 - lr}')
    A(f's_lshr_b32 s3, s3, {lr}')
    A('s_add_u32 s26, s26, s3')
    A('v_and_b32 v1, 63, v0')
    A('v_lshlrev_b32 v8, 4, v1')
    A('s_lshl_b32 s3, s24, 12')
    A('v_add_u32 v8, s3, v8')
    A('v_lshrrev_b32 v2, 3, v1')
    A('s_lshl_b32 s3, s24, 4')
    A('v_add_u32 v2, s3, v2')
    A('v_lshlrev_b32 v2, 11, v2')
    A('v_lshrrev_b32 v3, 4, v1')
    A('v_lshlrev_b32 v3, 1, v3')
    A('v_and_b32 v4, 7, v1')
    A('v_xor_b32 v4, v4, v3')
    A('v_lshl_add_u32 v12, v4, 4, v2')
    A(f'v_add_u32 v13, {8*2048 - 1024}, v12')
    A('s_lshl_b32 s31, s24, 11')
    A('s_mov_b32 s28, 0')
    A('s_mov_b32 s29, 0')
    A('s_waitcnt lgkmcnt(0)')
    A(f's_mul_i32 s3, s25, {128*7168}')
    A(f's_add_u32 s3, s3, {WS_H}')
    A('s_add_u32 s12, s4, s3')
    A('s_addc_u32 s13, s5, 0')
    A(f's_mov_b32 s14, {128*7168}')
    A('s_mov_b32 s15, 0x00020000')
    A('s_lshl_b32 s3, s26, 7')
    A('s_add_u32 s16, s8, s3')
    A('s_addc_u32 s17, s9, 0')
    A(f's_sub_u32 s18, {3584*2048}, s3')
    A('s_mov_b32 s19, 0x00020000')
    HB = 128
    def hreg(t, j, kk): return HB + 16*(t % D) + (j*2 + kk)*4
    def loads(t):
        L = [(['s_mov_b32 m0, s31'], f'buffer_load_dwordx4 v12, s[16:19], s29 offen lds'),
             ([], f'buffer_load_dwordx4 v13, s[16:19], s29 offen offset:1024 lds')]
        for q in range(4):
            L.append(([], f'buffer_load_dwordx4 {vr(HB + 16*(t % D) + 4*q, 4)}, v8, s[12:15], s28 offen offset:{q*1024}'))
        return L
    adv = ['s_add_u32 s28, s28, 16384', f's_add_u32 s29, s29, {64*2048}', 's_add_u32 s31, s31, 8192', f's_and_b32 s31, s31, {NS*8192 - 1}']
    for t in range(D - 1):
        for pre, ins in loads(t):
            for q in pre:
                A(q); A('s_nop 0')
            A(ins)
        for q in adv: A(q)
    A('v_lshrrev_b32 v2, 2, v1')
    A('v_lshlrev_b32 v2, 7, v2')
    A('v_and_b32 v4, 3, v1')
    A('v_lshl_add_u32 v2, v4, 3, v2')
    A('v_bfe_u32 v3, v1, 3, 2')
    for i in range(4):
        A(f'v_xor_b32 v4, {i}, v3')
        A(f'v_lshl_add_u32 v{20+i}, v4, 5, v2')
        A(f'v_mov_b32 v{16+i}, v{20+i}')
    A('s_mov_b32 s33, 0')
    for r in range(32): A(f'v_mov_b32 v{96+r}, 0')
    A('s_lshl_b32 s3, s25, 7')
    A('s_lshl_b32 s35, s24, 5')
    A('s_add_u32 s3, s3, s35')
    A('v_and_b32 v2, 15, v1')
    A('v_add_u32 v2, s3, v2')
    A('s_lshl_b32 s3, s26, 7')
    A('v_bfe_u32 v3, v1, 4, 1')
    A('v_lshlrev_b32 v3, 5, v3')
    A('v_lshrrev_b32 v4, 5, v1')
    A('v_lshl_add_u32 v3, v4, 4, v3')
    A('v_add_u32 v3, s3, v3')
    A(f'v_sub_u32 v6, {2048 - 14 - 64}, v3')
    A('s_cmp_ge_u32 s26, 8')
    A('s_cselect_b64 vcc, -1, 0')
    A('v_cndmask_b32 v6, v3, v6, vcc')
    A(f's_movk_i32 s3, {PSTR}')
    for j in range(2):
        A(f'v_add_u32 v4, {16*j}, v2')
        A(f'v_lshl_add_u32 v{24+j}, v4, 11, v3')
        A('v_sub_u32 v5, 2048, v4')
        A('v_min_u32 v4, v4, v5')
        A('v_mul_lo_u32 v4, v4, s3')
        A(f'v_add_u32 v{26+j}, v4, v6')
    A('s_cselect_b32 s48, 64, 0')
    A('s_cselect_b32 s49, 0, 64')
    A(f's_add_u32 s50, s48, {WS_QF - WS_PF}')
    A(f's_add_u32 s51, s49, {WS_QF - WS_PF}')
    srd(A, 40 if not st else 84, 6, 7, 4 << 20)
    SX = 40 if not st else 84
    SO = 44 if not st else 88
    srd(A, SO, 10, 11, 4 << 20)
    A(f's_add_u32 s20, s4, {WS_PF}')
    A('s_addc_u32 s21, s5, 0')
    A(f's_mov_b32 s22, {(WS_QF - WS_PF) + 1025*PSTR}')
    A('s_mov_b32 s23, 0x00020000')
    A(f's_mov_b32 s36, {WS_QF - WS_PF}')
    A('s_xor_b32 s3, s25, s26')
    A('s_and_b32 s3, s3, 8')
    A('s_cselect_b32 s37, 1.0, -1.0')
    A('s_mov_b32 s38, 0xbfb8aa3b')
    A('s_mov_b32 s39, 0xffff0000')

    FB = [32, 64]
    def wf(b, i, kk): return FB[b] + (i*2 + kk)*4
    def acc(i, j): return vr(96 + (i*2 + j)*4, 4)
    def mf(t):
        b = t & 1
        return [f'v_mfma_f32_16x16x32_bf16 {acc(i,j)}, {vr(wf(b,i,kk),4)}, {vr(hreg(t,j,kk),4)}, {acc(i,j)}' for i in range(4) for j in range(2) for kk in range(2)]
    def reads(b):
        L = []
        for i in range(4):
            for kk in range(2):
                L += [f'ds_read_b64_tr_b16 {vr(wf(b,i,kk),2)}, v{16+i} offset:{kk*4096}', f'ds_read_b64_tr_b16 {vr(wf(b,i,kk)+2,2)}, v{16+i} offset:{kk*4096+2048}']
        return L
    rot = ['s_add_u32 s33, s33, 8192', f's_and_b32 s33, s33, {NS*8192-1}'] + [f'v_add_u32 v{16+q}, s33, v{20+q}' for q in range(4)]
    A(f's_waitcnt vmcnt({6*(D-1) - 2})')
    A('s_barrier')
    for r in reads(0): A(r)
    for q in rot: A(q)
    if st: stamp(A, 1)
    EX = 256
    def epi_loads():
        L = []
        for j in range(2):
            for ip in range(2):
                n = j*2 + ip
                L.append(f'buffer_load_dwordx4 {vr(E0+12*n,4)}, v{24+j}, s[{SX}:{SX+3}], 0 offen offset:{ip*64}')
                L.append(f'buffer_load_dwordx4 {vr(E0+12*n+4,4)}, v{26+j}, s[20:23], s{48+ip} offen')
                L.append(f'buffer_load_dwordx4 {vr(E0+12*n+8,4)}, v{26+j}, s[20:23], s{50+ip} offen')
        return L
    def body(t, nout_top, do_load, do_read, extra=None):
        F = {}
        def add(s, ins): F.setdefault(s, []).append(ins)
        A(f's_waitcnt lgkmcnt(0) vmcnt({nout_top})')
        if do_read:
            add(opt.get('barpos', 0), 's_barrier')
            for n, r in enumerate(reads((t + 1) & 1)):
                add(min(max(n, opt.get('barpos', 0)), 14), r)
            for q in rot: add(15, q)
        if do_load:
            ls = opt.get('ld_slots', [1, 3, 5, 7, 9, 11])
            for (pre, ins), sl in zip(loads(t + D - 1), ls):
                for q in pre: add(sl - 1, q)
                add(sl, ins)
            for n, q in enumerate(adv): add(min(15, ls[-1] + 1 + n), q)
        interleave(A, mf(t), F)
        if extra:
            for q in extra: A(q)
    steady = 6*(D - 3) + 4
    nloop = (NK - D) // D
    A('s_mov_b32 s32, 0')
    A('.p2align 6')
    A(f'{name}_loop:')
    for u in range(D):
        body(u, steady, True, True)
    A('s_add_u32 s32, s32, 1')
    A(f's_cmp_lt_u32 s32, {nloop}')
    A(f's_cbranch_scc1 {name}_loop')
    assert nloop * D == NK - D
    E0 = HB
    for u in range(D):
        t = NK - D + u
        rem = NK - 1 - t
        issued_after = min(rem, D - 2)
        ne = 12 if u >= 4 else 0
        if rem >= 1: n = 6*(issued_after - 1) + 4 + ne
        else: n = ne
        body(t, n, u == 0, rem >= 1, extra=epi_loads() if u == 3 else None)
    if st: stamp(A, 2)
    A('s_nop 7')
    A('s_cmp_ge_u32 s26, 8')
    A(f's_cbranch_scc1 {name}_epi1')
    for mir in range(2):
      if mir: A(f'{name}_epi1:')
      for j in range(2):
        for ip in range(2):
          n = j*2 + ip
          a0 = 96 + ((2*ip)*2 + j)*4; a1 = 96 + ((2*ip + 1)*2 + j)*4
          for r in range(4):
              A(f'v_permlane16_swap_b32 v{a0+r}, v{a1+r}')
          Z = [a0 + r for r in range(4)] + [a1 + r for r in range(4)]
          T = 32
          for q in range(4):
              A(f'v_cvt_pk_bf16_f32 v{T+q}, v{Z[2*q]}, v{Z[2*q+1]}')
          for q in range(4):
              A(f'v_lshlrev_b32 v{Z[2*q]}, 16, v{T+q}')
              A(f'v_and_b32 v{Z[2*q+1]}, s39, v{T+q}')
          for e in range(8): A(f'v_mul_f32 v{T+e}, s38, v{Z[e]}')
          for e in range(8): A(f'v_exp_f32 v{T+e}, v{T+e}')
          for e in range(8): A(f'v_add_f32 v{T+e}, 1.0, v{T+e}')
          for e in range(8): A(f'v_rcp_f32 v{T+e}, v{T+e}')
          for e in range(8): A(f'v_mul_f32 v{Z[e]}, v{Z[e]}, v{T+e}')
          for q in range(4):
              A(f'v_cvt_pk_bf16_f32 v{T+q}, v{Z[2*q]}, v{Z[2*q+1]}')
          for q in range(4):
              A(f'v_lshlrev_b32 v{Z[2*q]}, 16, v{T+q}')
              A(f'v_and_b32 v{Z[2*q+1]}, s39, v{T+q}')
          A(f's_waitcnt vmcnt({3*(3-n) + n})')
          X = E0 + 12*n; P = X + 4; Q = X + 8
          for q in range(4):
              lo, hi = (2*q, 2*q + 1) if not mir else (7 - 2*q, 6 - 2*q)
              A(f'v_lshlrev_b32 v{T+lo}, 16, v{P+q}')
              A(f'v_and_b32 v{T+hi}, s39, v{P+q}')
              A(f'v_lshlrev_b32 v{T+8+lo}, 16, v{Q+q}')
              A(f'v_and_b32 v{T+8+hi}, s39, v{Q+q}')
          for e in range(8): A(f'v_fma_f32 v{T+e}, s37, v{T+8+e}, v{T+e}')
          for q in range(4):
              A(f'v_cvt_pk_bf16_f32 v{T+8+q}, v{T+2*q}, v{T+2*q+1}')
          for q in range(4):
              A(f'v_lshlrev_b32 v{T+2*q}, 16, v{T+8+q}')
              A(f'v_and_b32 v{T+2*q+1}, s39, v{T+8+q}')
          for e in range(8): A(f'v_mul_f32 v{T+e}, v{T+e}, v{Z[e]}')
          for q in range(4):
              A(f'v_cvt_pk_bf16_f32 v{T+8+q}, v{T+2*q}, v{T+2*q+1}')
          for q in range(4):
              A(f'v_lshlrev_b32 v{T+2*q}, 16, v{T+8+q}')
              A(f'v_and_b32 v{T+2*q+1}, s39, v{T+8+q}')
              A(f'v_lshlrev_b32 v{T+16+2*q}, 16, v{X+q}')
              A(f'v_and_b32 v{T+16+2*q+1}, s39, v{X+q}')
          for e in range(8): A(f'v_add_f32 v{T+e}, v{T+e}, v{T+16+e}')
          for q in range(4):
              A(f'v_cvt_pk_bf16_f32 v{X+q}, v{T+2*q}, v{T+2*q+1}')
          A(f'buffer_store_dwordx4 {vr(X,4)}, v{24+j}, s[{SO}:{SO+3}], 0 offen offset:{ip*64}')
      if not mir: A(f's_branch {name}_epid')
    A(f'{name}_epid:')
    if st:
        A('s_waitcnt vmcnt(0)')
        stamp(A, 3)
        stamp_out(A, 4)
    A(f'{name}_done:')
    A('s_endpgm')
    nv = HB + 16*D
    A(kd(name, nv, 96, nv))
    return NS*8192

if __name__ == '__main__':
    import sys, json
    opt = json.loads(sys.argv[2]) if len(sys.argv) > 2 else {}
    A = Asm()
    A(f'; @launch kernel=g4_kernel grid=(256,1,1) block=(256,1,1) lds={opt.get("ns",16)*8192}')
    A('.amdgcn_target "amdgcn-amd-amdhsa--gfx950"')
    gen_g4(A, 'g4_kernel', opt)
    open(sys.argv[1], 'w').write(A.text())
```

```python
from asmlib import *
WS_XN = 0
WS_X = 26 << 20
XPLANE = 544*1152
WS_MS = 30 << 20
WS_MD = 33 << 20
NWG0 = 544 + 140 + 80

def gen_k0(A, name, opt):
    A(head(name))
    A(f's_cmp_ge_u32 s2, {NWG0}')
    A(f's_cbranch_scc1 {name}_done')
    A('s_load_dwordx2 s[4:5], s[0:1], 88')
    A('s_load_dwordx2 s[6:7], s[0:1], 0')
    A('v_lshrrev_b32 v1, 6, v0')
    A('v_and_b32 v2, 63, v0')
    A('v_readfirstlane_b32 s24, v1')
    A('s_cmp_ge_u32 s2, 544')
    A(f's_cbranch_scc1 {name}_pack')
    A('s_mul_i32 s28, s2, 1152')
    A('s_waitcnt lgkmcnt(0)')
    A(f's_add_u32 s20, s4, {WS_X}')
    A('s_addc_u32 s21, s5, 0')
    A(f's_mov_b32 s22, {4*XPLANE}')
    A('s_mov_b32 s23, 0x00020000')
    A('s_cmp_ge_u32 s2, 513')
    A(f's_cbranch_scc1 {name}_zero')
    A('s_sub_u32 s25, 2048, s2')
    A('s_and_b32 s25, s25, 2047')
    A('s_cmp_eq_u32 s24, 0')
    A('s_cselect_b32 s25, s2, s25')
    A('s_sub_u32 s26, 1024, s2')
    A('s_cmp_eq_u32 s24, 2')
    A('s_cselect_b32 s25, s26, s25')
    A('s_add_u32 s26, 1024, s2')
    A('s_cmp_eq_u32 s24, 3')
    A('s_cselect_b32 s25, s26, s25')
    A('s_lshl_b32 s25, s25, 11')
    srd(A, 12, 6, 7, 4 << 20)
    srd(A, 16, 4, 5, 4 << 20)
    A('v_lshlrev_b32 v3, 4, v2')
    A('buffer_load_dwordx4 v[8:11], v3, s[12:15], s25 offen')
    A('buffer_load_dwordx4 v[12:15], v3, s[12:15], s25 offen offset:1024')
    A('s_mov_b32 s39, 0xffff0000')
    A('s_waitcnt vmcnt(0)')
    for q in range(8):
        A(f'v_lshlrev_b32 v{16+2*q}, 16, v{8+q}')
        A(f'v_and_b32 v{17+2*q}, s39, v{8+q}')
    def reduce(src0, n, dst):
        A('s_nop 1')
        for ror in (1, 2, 4, 8):
            A(f'v_add_f32_dpp v{dst}, v{dst}, v{dst} row_ror:{ror} row_mask:0xf bank_mask:0xf')
            A('s_nop 1')
        for k, ln in enumerate((0, 16, 32, 48)):
            A(f'v_readlane_b32 s{30+k}, v{dst}, {ln}')
        A('s_nop 1')
        A(f'v_mov_b32 v{dst}, s30')
        A(f'v_add_f32 v{dst}, s31, v{dst}')
        A(f'v_add_f32 v{dst}, s32, v{dst}')
        A(f'v_add_f32 v{dst}, s33, v{dst}')
    for q in range(8): A(f'v_add_f32 v{32+q}, v{16+2*q}, v{17+2*q}')
    for q in range(4): A(f'v_add_f32 v{32+q}, v{32+q}, v{36+q}')
    A('v_add_f32 v32, v32, v34'); A('v_add_f32 v33, v33, v35'); A('v_add_f32 v4, v32, v33')
    reduce(0, 0, 4)
    A('v_mul_f32 v4, 0x3a800000, v4')
    for q in range(16): A(f'v_sub_f32 v{32+q}, v{16+q}, v4')
    A('v_mul_f32 v5, v32, v32'); A('v_mul_f32 v6, v33, v33')
    for q in range(2, 16, 2):
        A(f'v_fmac_f32 v5, v{32+q}, v{32+q}'); A(f'v_fmac_f32 v6, v{33+q}, v{33+q}')
    A('v_add_f32 v5, v5, v6')
    reduce(0, 0, 5)
    A('v_mul_f32 v5, 0x3a800000, v5')
    A('v_cvt_pk_bf16_f32 v6, v4, v5')
    A('v_lshlrev_b32 v4, 16, v6')
    A('v_and_b32 v5, s39, v6')
    A('v_add_f32 v5, 0x3727c5ac, v5')
    A('v_cvt_pk_bf16_f32 v5, v5, v5')
    A('v_and_b32 v5, s39, v5')
    A('v_sqrt_f32 v5, v5')
    A('s_nop 0')
    A('v_cvt_pk_bf16_f32 v5, v5, v5')
    A('v_and_b32 v5, s39, v5')
    A('v_rcp_f32 v6, v5')
    A('s_nop 0')
    A('v_fma_f32 v7, -v5, v6, 1.0')
    A('v_fmac_f32 v6, v7, v6')
    for q in range(16): A(f'v_sub_f32 v{32+q}, v{16+q}, v4')
    for q in range(8): A(f'v_cvt_pk_bf16_f32 v{8+q}, v{32+2*q}, v{33+2*q}')
    for q in range(8):
        A(f'v_lshlrev_b32 v{16+2*q}, 16, v{8+q}')
        A(f'v_and_b32 v{17+2*q}, s39, v{8+q}')
    for q in range(16): A(f'v_mul_f32 v{32+q}, v{16+q}, v6')
    for q in range(16): A(f'v_fma_f32 v{16+q}, -v{32+q}, v5, v{16+q}')
    for q in range(16): A(f'v_fmac_f32 v{32+q}, v{16+q}, v6')
    for q in range(8): A(f'v_cvt_pk_bf16_f32 v{8+q}, v{32+2*q}, v{33+2*q}')
    A('buffer_store_dwordx4 v[8:11], v3, s[16:19], s25 offen')
    A('buffer_store_dwordx4 v[12:15], v3, s[16:19], s25 offen offset:1024')
    A('s_lshl_b32 s3, s24, 11')
    A('v_add_u32 v7, s3, v3')
    A('ds_write_b128 v7, v[8:11]')
    A('ds_write_b128 v7, v[12:15] offset:1024')
    A('s_and_b32 s3, s2, 511')
    A('s_cmp_eq_u32 s3, 0')
    A('s_cselect_b32 s27, 0.5, 1.0')
    A('s_waitcnt lgkmcnt(0)')
    A('s_barrier')
    def fold(last):
        A('v_lshlrev_b32 v41, 1, v40')
        A('v_sub_u32 v42, 2048, v41')
        A('v_and_b32 v42, 2047, v42')
        A('v_sub_u32 v43, 1024, v41')
        A('v_add_u32 v44, 1024, v41')
        if last:
            A('v_min_u32 v41, 512, v41'); A('v_max_u32 v42, 1536, v42'); A('v_max_i32 v43, 512, v43'); A('v_min_u32 v44, 1536, v44')
        for c in range(4):
            for r in range(4):
                A(f'ds_read_u16_d16_hi v{48+4*c+r}, v{41+c} offset:{r*2048}')
        A('s_waitcnt lgkmcnt(0)')
        for c in range(4):
            b = 48 + 4*c
            for r in range(4): A(f'v_and_b32 v{b+r}, s39, v{b+r}')
            A(f'v_add_f32 v64, v{b}, v{b+1}')
            A(f'v_sub_f32 v65, v{b}, v{b+1}')
            A(f'v_add_f32 v66, v{b+2}, v{b+3}')
            A(f'v_sub_f32 v67, v{b+2}, v{b+3}')
            A(f'v_add_f32 v{b}, v64, v66')
            A(f'v_sub_f32 v{b+1}, v64, v66')
            A(f'v_sub_f32 v{b+2}, v65, v67')
            A(f'v_add_f32 v{b+3}, v65, v67')
        A('v_and_b32 v45, 255, v40')
        A('v_cmp_eq_u32 vcc, 0, v45')
        A('v_mov_b32 v45, s27')
        A('v_mul_f32 v46, 0.5, v45')
        A('v_cndmask_b32 v45, v45, v46, vcc')
        if last:
            A('v_cmp_ge_u32 vcc, 256, v40')
        A('v_lshlrev_b32 v41, 1, v40')
        for k in range(4):
            c0, c1, c2, c3 = 48+k, 52+k, 56+k, 60+k
            if k < 2:
                A(f'v_add_f32 v64, v{c0}, v{c1}'); A(f'v_add_f32 v65, v{c2}, v{c3}')
                A('v_add_f32 v66, v64, v65'); A('v_sub_f32 v67, v64, v65')
            else:
                A(f'v_sub_f32 v64, v{c0}, v{c1}'); A(f'v_sub_f32 v65, v{c2}, v{c3}')
                A('v_sub_f32 v66, v64, v65'); A('v_add_f32 v67, v64, v65')
            A('v_mul_f32 v66, v66, v45'); A('v_mul_f32 v67, v67, v45')
            A(f'v_cvt_pk_bf16_f32 v{68+k}, v66, v67')
            if last:
                A(f'v_cndmask_b32 v{68+k}, 0, v{68+k}, vcc')
            A(f's_add_u32 s3, s28, {k*XPLANE}')
            A(f'buffer_store_short v{68+k}, v41, s[20:23], s3 offen')
            A(f'buffer_store_short_d16_hi v{68+k}, v41, s[20:23], s3 offen offset:576')
    A('v_mov_b32 v40, v0')
    fold(False)
    A('s_cmp_lg_u32 s24, 0')
    A(f's_cbranch_scc1 {name}_done')
    A('v_add_u32 v40, 256, v0')
    A('s_mov_b32 exec_hi, 0')
    fold(True)
    A('s_endpgm')
    A(f'{name}_zero:')
    A('v_mov_b32 v8, 0'); A('v_mov_b32 v9, 0'); A('v_mov_b32 v10, 0'); A('v_mov_b32 v11, 0')
    A(f's_mul_i32 s3, s24, {XPLANE}')
    A('s_add_u32 s3, s3, s28')
    A('v_lshlrev_b32 v3, 4, v2')
    A('buffer_store_dwordx4 v[8:11], v3, s[20:23], s3 offen')
    A('s_mov_b64 exec, 0xff')
    A('buffer_store_dwordx4 v[8:11], v3, s[20:23], s3 offen offset:1024')
    A('s_endpgm')
    A(f'{name}_pack:')
    A('s_load_dwordx8 s[8:15], s[0:1], 8')
    A('s_sub_u32 s25, s2, 544')
    A('v_and_b32 v3, 15, v2')
    A('v_lshrrev_b32 v4, 4, v2')
    A('v_lshlrev_b32 v5, 4, v2')
    A('s_cmp_ge_u32 s25, 140')
    A(f's_cbranch_scc1 {name}_packd')
    A('s_mul_i32 s26, s25, 52429')
    A('s_lshr_b32 s26, s26, 18')
    A('s_mul_i32 s27, s26, 5')
    A('s_sub_u32 s27, s25, s27')
    A('s_mul_i32 s28, s26, 9363')
    A('s_lshr_b32 s28, s28, 16')
    A('s_mul_i32 s29, s28, 7')
    A('s_sub_u32 s29, s26, s29')
    A('s_mul_i32 s29, s29, 160')
    A('s_lshl_b32 s30, s27, 5')
    A('s_add_u32 s29, s29, s30')
    A('s_and_b32 s30, s28, 1')
    A('s_add_u32 s29, s29, s30')
    A('s_lshl_b32 s29, s29, 12')
    A('s_lshl_b32 s30, s24, 6')
    A('s_add_u32 s29, s29, s30')
    A('v_lshlrev_b32 v6, 13, v3')
    A('v_lshl_add_u32 v6, v4, 4, v6')
    A('s_mul_i32 s26, s26, 85')
    A('s_add_u32 s26, s26, s27')
    A('s_mul_i32 s30, s24, 5')
    A('s_add_u32 s26, s26, s30')
    A('s_lshl_b32 s26, s26, 10')
    A('s_waitcnt lgkmcnt(0)')
    A('s_cmp_lt_u32 s28, 2')
    A('s_cselect_b32 s16, s8, s10')
    A('s_cselect_b32 s17, s9, s11')
    A(f's_mov_b32 s18, {2048*4096}')
    A('s_mov_b32 s19, 0x00020000')
    A(f's_add_u32 s20, s4, {WS_MS}')
    A('s_addc_u32 s21, s5, 0')
    A(f's_mov_b32 s22, {2380*1024}')
    A('s_mov_b32 s23, 0x00020000')
    for k in range(5):
        A(f'buffer_load_dwordx4 {vr(8+4*k,4)}, v6, s[16:19], s29 offen offset:{256*k}')
    for k in range(5):
        if k == 4:
            A('s_cmp_lg_u32 s24, 0')
            A(f's_cbranch_scc1 {name}_done')
        A(f's_waitcnt vmcnt(4)')
        A(f'buffer_store_dwordx4 {vr(8+4*k,4)}, v5, s[20:23], s26 offen')
        A(f's_add_u32 s26, s26, {20*1024}')
    A('s_endpgm')
    A(f'{name}_packd:')
    A('s_sub_u32 s25, s25, 140')
    A('s_mul_i32 s26, s25, 52429')
    A('s_lshr_b32 s26, s26, 19')
    A('s_mul_i32 s27, s26, 10')
    A('s_sub_u32 s27, s25, s27')
    A('s_and_b32 s28, s26, 3')
    A('s_mul_i32 s29, s28, 160')
    A('s_lshr_b32 s30, s27, 1')
    A('s_lshl_b32 s30, s30, 5')
    A('s_add_u32 s29, s29, s30')
    A('s_and_b32 s30, s27, 1')
    A('s_add_u32 s29, s29, s30')
    A('s_lshl_b32 s29, s29, 11')
    A('s_lshl_b32 s30, s24, 6')
    A('s_add_u32 s29, s29, s30')
    A('v_lshlrev_b32 v6, 12, v3')
    A('v_lshl_add_u32 v6, v4, 4, v6')
    A('s_mul_i32 s31, s26, 90')
    A('s_add_u32 s31, s31, s27')
    A('s_mul_i32 s30, s24, 10')
    A('s_add_u32 s31, s31, s30')
    A('s_lshl_b32 s31, s31, 10')
    A('s_waitcnt lgkmcnt(0)')
    A('s_cmp_lt_u32 s26, 4')
    A('s_cselect_b32 s16, s12, s14')
    A('s_cselect_b32 s17, s13, s15')
    A(f's_mov_b32 s18, {1024*2048}')
    A('s_mov_b32 s19, 0x00020000')
    A(f's_add_u32 s20, s4, {WS_MD}')
    A('s_addc_u32 s21, s5, 0')
    A(f's_mov_b32 s22, {720*1024}')
    A('s_mov_b32 s23, 0x00020000')
    for k in range(3):
        A(f'buffer_load_dwordx4 {vr(8+4*k,4)}, v6, s[16:19], s29 offen offset:{256*k}')
    for k in range(3):
        if k == 2:
            A('s_cmp_lg_u32 s24, 0')
            A(f's_cbranch_scc1 {name}_done')
        A(f's_waitcnt vmcnt(2)')
        A(f'buffer_store_dwordx4 {vr(8+4*k,4)}, v5, s[20:23], s31 offen')
        A(f's_add_u32 s31, s31, {40*1024}')
    A(f'{name}_done:')
    A('s_endpgm')
    A(kd(name, 72, 48, 72))

if __name__ == '__main__':
    import sys, json
    A = Asm()
    A('; @launch kernel=k0_kernel grid=(544,1,1) block=(256,1,1) lds=8192')
    A('.amdgcn_target "amdgcn-amd-amdhsa--gfx950"')
    gen_k0(A, 'k0_kernel', {})
    open(sys.argv[1], 'w').write(A.text())
```

```python
from asmlib import *
from g3b import stamp, stamp_out
from dft import gen_dft

WS_XN = 0
WS_H = 4 << 20
WS_STAMP = 200 << 20

def gen_k1(A, name, opt):
    st = opt.get('stamp', False)
    A(head(name))
    A('s_cmp_ge_u32 s2, 256')
    A(f's_cbranch_scc1 {name}_done')
    if st: stamp(A, 0)
    A('s_load_dwordx2 s[4:5], s[0:1], 88')
    A('s_load_dwordx4 s[8:11], s[0:1], 48')
    A('s_load_dwordx2 s[52:53], s[0:1], 64')
    A('v_lshrrev_b32 v1, 6, v0')
    A('s_and_b32 s27, s2, 7')
    A('v_readfirstlane_b32 s24, v1')
    A('s_lshr_b32 s3, s2, 3')
    A('v_and_b32 v1, 63, v0')
    A('s_cmp_ge_u32 s3, 28')
    A(f's_cbranch_scc1 {name}_dft')
    A('s_and_b32 s25, s27, 1')
    A('s_lshl_b32 s25, s25, 2')
    A('s_and_b32 s26, s3, 3')
    A('s_add_u32 s25, s25, s26')
    A('s_lshr_b32 s26, s27, 1')
    A('s_mul_i32 s26, s26, 7')
    A('s_lshr_b32 s3, s3, 2')
    A('s_add_u32 s26, s26, s3')
    A('s_waitcnt lgkmcnt(0)')
    A('s_lshl_b32 s3, s25, 19')
    A('s_add_u32 s12, s4, s3')
    A('s_addc_u32 s13, s5, 0')
    A(f's_mov_b32 s14, {256*2048}')
    A('s_mov_b32 s15, 0x00020000')
    A('s_cmp_ge_u32 s24, 2')
    A('s_cselect_b32 s16, s10, s8')
    A('s_cselect_b32 s17, s11, s9')
    A('s_lshl_b32 s3, s26, 8')
    A('s_add_u32 s16, s16, s3')
    A('s_addc_u32 s17, s17, 0')
    A(f's_sub_u32 s18, {1024*7168}, s3')
    A('s_mov_b32 s19, 0x00020000')
    A('s_lshl_b32 s20, s25, 1')
    A('s_and_b32 s3, s24, 1')
    A('s_add_u32 s20, s20, s3')
    A('s_mul_i32 s20, s20, 56')
    A('s_lshl_b32 s3, s26, 1')
    A('s_add_u32 s20, s20, s3')
    A('s_lshr_b32 s3, s24, 1')
    A('s_add_u32 s20, s20, s3')
    A('s_lshl_b32 s20, s20, 14')
    A(f's_add_u32 s20, s20, {WS_H}')
    A('s_add_u32 s20, s20, s4')
    A('s_addc_u32 s21, s5, 0')
    A('s_mov_b32 s22, 16384')
    A('s_mov_b32 s23, 0x00020000')
    A(f's_mov_b32 s54, {3584*2048}')
    A('s_mov_b32 s55, 0x00020000')
    A('s_mul_i32 s56, s25, 28')
    A('s_add_u32 s56, s56, s26')
    A('s_lshl_b32 s56, s56, 2')
    A('s_add_u32 s56, s56, s24')
    A('s_lshl_b32 s56, s56, 13')
    A('s_add_u32 s57, s56, 4096')
    A('v_lshlrev_b32 v36, 6, v1')
    A('v_lshrrev_b32 v2, 3, v1')
    A('s_lshl_b32 s3, s24, 6')
    A('v_add_u32 v2, s3, v2')
    A('v_lshlrev_b32 v2, 11, v2')
    A('v_lshrrev_b32 v3, 4, v1')
    A('v_and_b32 v4, 7, v1')
    A('v_xor_b32 v5, v4, v3')
    A('v_xor_b32 v6, 4, v5')
    A('v_lshl_add_u32 v5, v5, 4, v2')
    A('v_lshl_add_u32 v6, v6, 4, v2')
    for p in range(8):
        A(f'v_add_u32 v{8+p}, {p*16384 - (p&3)*1024}, v{5 + (p&1)}')
    A('s_and_b32 s3, s24, 1')
    A('s_lshl_b32 s3, s3, 5')
    A('v_add_u32 v2, s3, v3')
    A('s_movk_i32 s3, 7168')
    A('v_mul_lo_u32 v2, v2, s3')
    A('v_and_b32 v4, 15, v1')
    A('v_lshlrev_b32 v5, 1, v3')
    A('v_xor_b32 v4, v4, v5')
    A('v_xor_b32 v5, 8, v4')
    A('v_lshl_add_u32 v4, v4, 4, v2')
    A('v_lshl_add_u32 v5, v5, 4, v2')
    for p in range(8):
        A(f'v_add_u32 v{16+p}, {p*4*7168 - (p&3)*1024}, v{4 + ((p>>1)&1)}')
    A('s_lshl_b32 s30, s24, 13')
    A('s_lshl_b32 s31, s24, 13')
    A('s_add_u32 s31, s31, 65536')
    A('s_mov_b32 s28, 0')
    A('s_mov_b32 s29, 0')
    def dma_x():
        L = []
        for p in range(8):
            pre = []
            if p == 0: pre = ['s_mov_b32 m0, s30']
            if p == 4: pre = ['s_add_u32 m0, s30, 4096']
            L.append((pre, f'buffer_load_dwordx4 v{8+p}, s[12:15], s28 offen offset:{(p&3)*1024} lds'))
        return L
    def dma_w():
        L = []
        for p in range(8):
            pre = []
            if p == 0: pre = ['s_mov_b32 m0, s31']
            if p == 4: pre = ['s_add_u32 m0, s31, 4096']
            L.append((pre, f'buffer_load_dwordx4 v{16+p}, s[16:19], s29 offen offset:{(p&3)*1024} lds'))
        return L
    adv_x = ['s_add_u32 s28, s28, 128', 's_xor_b32 s30, s30, 0x8000']
    adv_w = [f's_add_u32 s29, s29, {64*7168}', 's_add_u32 s31, s31, 0x8000',
             f's_cmp_ge_u32 s31, {163840}', f's_cselect_b32 s3, {98304}, 0', 's_sub_u32 s31, s31, s3']
    def emit_dma(L):
        for pre, ins in L:
            for q in pre:
                A(q); A('s_nop 0')
            A(ins)
    emit_dma(dma_x()); [A(q) for q in adv_x]
    emit_dma(dma_w()); [A(q) for q in adv_w]
    emit_dma(dma_w()); [A(q) for q in adv_w]
    emit_dma(dma_x()); [A(q) for q in adv_x]
    A('s_and_b32 s3, s24, 1')
    A('s_lshl_b32 s3, s3, 7')
    A('v_and_b32 v2, 15, v1')
    A('v_add_u32 v2, s3, v2')
    A('v_lshlrev_b32 v2, 7, v2')
    A('v_lshrrev_b32 v3, 4, v1')
    A('v_bfe_u32 v4, v1, 1, 3')
    A('v_xor_b32 v3, v3, v4')
    for kk in range(2):
        A(f'v_xor_b32 v4, {4*kk}, v3')
        A(f'v_lshl_add_u32 v{24+kk}, v4, 4, v2')
    A('v_lshrrev_b32 v2, 4, v1')
    A('v_bfe_u32 v3, v1, 2, 2')
    A('v_lshl_add_u32 v2, v2, 3, v3')
    A('v_lshlrev_b32 v2, 8, v2')
    A('v_and_b32 v4, 3, v1')
    A('v_lshl_add_u32 v2, v4, 3, v2')
    A('v_bfe_u32 v4, v1, 4, 1')
    A('v_lshl_add_u32 v3, v4, 2, v3')
    A('s_lshr_b32 s3, s24, 1')
    A('s_lshl_b32 s3, s3, 2')
    A('v_xor_b32 v3, s3, v3')
    A('s_mov_b32 s33, 65536')
    for i in range(4):
        A(f'v_xor_b32 v4, {i}, v3')
        A(f'v_lshl_add_u32 v{32+i}, v4, 5, v2')
        A(f'v_add_u32 v{28+i}, s33, v{32+i}')
    for r in range(256):
        A(f'v_accvgpr_write_b32 a{r}, 0')

    WF = [64, 128]; XF = [96, 160]
    def acc(i, j):
        return ar((i*8 + j)*4, 4)
    def mf(b):
        return [f'v_mfma_f32_16x16x32_bf16 {acc(i,j)}, {vr(WF[b]+4*i,4)}, {vr(XF[b]+4*j,4)}, {acc(i,j)}' for i in range(8) for j in range(8)]
    def reads(kk, b):
        def w(i):
            off = (i >> 2)*16384 + kk*8192
            return [f'ds_read_b64_tr_b16 {vr(WF[b]+4*i,2)}, v{28+(i&3)} offset:{off}',
                    f'ds_read_b64_tr_b16 {vr(WF[b]+4*i+2,2)}, v{28+(i&3)} offset:{off+1024}']
        def x(j):
            return [f'ds_read_b128 {vr(XF[b]+4*j,4)}, v{24+kk} offset:{j*2048}']
        L = w(0)
        for j in range(8): L += x(j)
        for i in range(1, 8): L += w(i)
        return L
    A('s_waitcnt vmcnt(16)')
    A('s_barrier')
    for r in reads(0, 0): A(r)
    A('v_xor_b32 v24, 0x8000, v24')
    if st: stamp(A, 1)

    rd_slots = opt.get('rd_slots', [2*i for i in range(24)])
    wslots = opt.get('wslots', [(0, 3 + 6*i) for i in range(8)])
    xslots = opt.get('xslots', [(1, 3 + 6*i) for i in range(8)])
    barpos = opt.get('barpos', 1)
    def body(mode):
        F = [dict() for _ in range(2)]
        def add(kk, slot, ins):
            F[kk].setdefault(slot, []).append(ins)
        for kk in range(2):
            if kk == 1 and mode == 'last': continue
            nk = (kk + 1) & 1
            for r, s in zip(reads(nk, nk), rd_slots):
                add(kk, s + (barpos if kk == 1 else 0), r)
            add(kk, 53, f'v_xor_b32 v{24+nk}, 0x8000, v{24+nk}')
        if mode == 'full':
            for (pre, ins), (kk, s) in zip(dma_w(), wslots):
                for q in pre: add(kk, s - 2, q)
                add(kk, s, ins)
            for (pre, ins), (kk, s) in zip(dma_x(), xslots):
                for q in pre: add(kk, s - 2, q)
                add(kk, s, ins)
            for n, q in enumerate(adv_w): add(wslots[-1][0], 55 + n, q)
            for n, q in enumerate(adv_x): add(xslots[-1][0], 61 + n, q)
        if mode == 'nodma':
            add(1, 20, 'buffer_load_dword v37, v36, s[52:55], s56 offen')
            add(1, 40, 'buffer_load_dword v38, v36, s[52:55], s57 offen')
        if mode != 'last':
            add(0, 60, 's_add_u32 s33, s33, 0x8000')
            add(0, 60, f's_cmp_ge_u32 s33, 163840')
            add(0, 61, f's_cselect_b32 s33, 65536, s33')
            add(0, 62, 'v_add_u32 v28, s33, v32')
            add(0, 62, 'v_add_u32 v29, s33, v33')
            add(0, 63, 'v_add_u32 v30, s33, v34')
            add(0, 63, 'v_add_u32 v31, s33, v35')
        for kk in range(2):
            if kk == 1 and mode != 'last':
                A(f's_waitcnt lgkmcnt(0)')
                F[kk].setdefault(barpos - 1, [])
                F[kk][barpos - 1] = [f's_waitcnt vmcnt({8 if mode == "full" else 0})', 's_barrier'] + F[kk][barpos - 1]
                interleave(A, mf(kk), F[kk])
            else:
                A('s_waitcnt lgkmcnt(0)')
                interleave(A, mf(kk), F[kk])
    A('s_mov_b32 s32, 0')
    A('.p2align 6')
    A(f'{name}_loop:')
    body('full')
    A('s_add_u32 s32, s32, 1')
    A('s_cmp_lt_u32 s32, 14')
    A(f's_cbranch_scc1 {name}_loop')
    body('nodma')
    body('last')
    if st: stamp(A, 2)
    A('s_nop 15')
    A('v_lshlrev_b32 v2, 4, v1')
    A('s_mov_b32 s34, 0')
    n = 0
    for j in range(8):
        for ip in (0, 2):
            o = 64 + (n & 3)*24; n += 1
            for t in range(2):
                g0 = ((ip + t)*8 + j)*4; u0 = ((4 + ip + t)*8 + j)*4
                for r in range(4):
                    A(f'v_accvgpr_read_b32 v{o+8+t*4+r}, a{g0+r}')
                    A(f'v_accvgpr_read_b32 v{o+16+t*4+r}, a{u0+r}')
            for r in range(0, 8, 2):
                A(f'v_pk_mul_f32 {vr(o+8+r,2)}, {vr(o+8+r,2)}, {vr(o+16+r,2)}')
            for r in range(0, 8, 2):
                A(f'v_cvt_pk_bf16_f32 v{o+r//2}, v{o+8+r}, v{o+8+r+1}')
            A(f'buffer_store_dwordx4 {vr(o,4)}, v2, s[20:23], s34 offen offset:{(j & 1)*2048 + (ip >> 1)*1024}')
        if j & 1: A('s_add_u32 s34, s34, 4096')
    if st:
        A('s_waitcnt vmcnt(0)')
        stamp(A, 3)
        stamp_out(A, 4)
    A('s_endpgm')
    A(f'{name}_dft:')
    A('s_waitcnt lgkmcnt(0)')
    gen_dft(A, name, opt)
    if st:
        A('s_waitcnt vmcnt(0)')
        stamp(A, 3)
        stamp_out(A, 4)
    A('s_endpgm')
    A(f'{name}_spare:')
    A(f'{name}_done:')
    A('s_endpgm')
    A(kd(name, 512, 96, 256))
```

```python
import sys, json
from asmlib import *
from k0 import gen_k0, NWG0
from k1 import gen_k1
from g4b import gen_g4
HDR = open('recurrent_scan__spectral_fnet__glu_gated_bilinear__prompt.s.ref').read().split('; Override')[0]
def build(path, opt):
    A = Asm()
    A(HDR)
    A(f'; @launch kernel=k0_kernel grid=({NWG0},1,1) block=(256,1,1) lds=8192')
    A('; @launch kernel=k1_kernel grid=(256,1,1) block=(256,1,1) lds=163840')
    A(f'; @launch kernel=k2_kernel grid=(256,1,1) block=(256,1,1) lds={opt.get("ns",16)*8192}')
    A('.amdgcn_target "amdgcn-amd-amdhsa--gfx950"')
    gen_k0(A, 'k0_kernel', opt)
    gen_k1(A, 'k1_kernel', dict(opt, stamp=opt.get('stamp') == 1))
    gen_g4(A, 'k2_kernel', dict(opt, stamp=opt.get('stamp') == 2, ld_slots=[1,4,6,9,11,14]))
    open(path, 'w').write(A.text())
if __name__ == '__main__':
    build(sys.argv[1], json.loads(sys.argv[2]) if len(sys.argv) > 2 else {})
```

```python
from asmlib import *
WS_XN = 0
WS_X = 26 << 20
XPLANE = 544*1152
WS_MS = 30 << 20
WS_MD = 33 << 20
NWG0 = 544 + 140 + 80

def gen_k0(A, name, opt):
    A(head(name))
    nt = opt.get('k0touch', 0)
    A(f's_cmp_ge_u32 s2, {NWG0 + nt}')
    A(f's_cbranch_scc1 {name}_done')
    if nt:
        A(f's_cmp_ge_u32 s2, {nt}')
        A(f's_cbranch_scc0 {name}_touch')
        A(f's_sub_u32 s2, s2, {nt}')
    A('s_load_dwordx2 s[4:5], s[0:1], 88')
    A('s_load_dwordx2 s[6:7], s[0:1], 0')
    A('v_lshrrev_b32 v1, 6, v0')
    A('v_and_b32 v2, 63, v0')
    A('v_readfirstlane_b32 s24, v1')
    A('s_cmp_ge_u32 s2, 544')
    A(f's_cbranch_scc1 {name}_pack')
    A('s_mul_i32 s28, s2, 1152')
    A('s_waitcnt lgkmcnt(0)')
    A(f's_add_u32 s20, s4, {WS_X}')
    A('s_addc_u32 s21, s5, 0')
    A(f's_mov_b32 s22, {4*XPLANE}')
    A('s_mov_b32 s23, 0x00020000')
    A('s_cmp_ge_u32 s2, 513')
    A(f's_cbranch_scc1 {name}_zero')
    A('s_sub_u32 s25, 2048, s2')
    A('s_and_b32 s25, s25, 2047')
    A('s_cmp_eq_u32 s24, 0')
    A('s_cselect_b32 s25, s2, s25')
    A('s_sub_u32 s26, 1024, s2')
    A('s_cmp_eq_u32 s24, 2')
    A('s_cselect_b32 s25, s26, s25')
    A('s_add_u32 s26, 1024, s2')
    A('s_cmp_eq_u32 s24, 3')
    A('s_cselect_b32 s25, s26, s25')
    A('s_lshl_b32 s25, s25, 11')
    srd(A, 12, 6, 7, 4 << 20)
    srd(A, 16, 4, 5, 4 << 20)
    A('v_lshlrev_b32 v3, 4, v2')
    A('buffer_load_dwordx4 v[8:11], v3, s[12:15], s25 offen')
    A('buffer_load_dwordx4 v[12:15], v3, s[12:15], s25 offen offset:1024')
    A('s_mov_b32 s39, 0xffff0000')
    A('s_waitcnt vmcnt(0)')
    for q in range(8):
        A(f'v_lshlrev_b32 v{16+2*q}, 16, v{8+q}')
        A(f'v_and_b32 v{17+2*q}, s39, v{8+q}')
    def reduce(src0, n, dst):
        A('s_nop 1')
        for ror in (1, 2, 4, 8):
            A(f'v_add_f32_dpp v{dst}, v{dst}, v{dst} row_ror:{ror} row_mask:0xf bank_mask:0xf')
            A('s_nop 1')
        for k, ln in enumerate((0, 16, 32, 48)):
            A(f'v_readlane_b32 s{30+k}, v{dst}, {ln}')
        A('s_nop 1')
        A(f'v_mov_b32 v{dst}, s30')
        A(f'v_add_f32 v{dst}, s31, v{dst}')
        A(f'v_add_f32 v{dst}, s32, v{dst}')
        A(f'v_add_f32 v{dst}, s33, v{dst}')
    for q in range(8): A(f'v_add_f32 v{32+q}, v{16+2*q}, v{17+2*q}')
    for q in range(4): A(f'v_add_f32 v{32+q}, v{32+q}, v{36+q}')
    A('v_add_f32 v32, v32, v34'); A('v_add_f32 v33, v33, v35'); A('v_add_f32 v4, v32, v33')
    reduce(0, 0, 4)
    A('v_mul_f32 v4, 0x3a800000, v4')
    for q in range(16): A(f'v_sub_f32 v{32+q}, v{16+q}, v4')
    A('v_mul_f32 v5, v32, v32'); A('v_mul_f32 v6, v33, v33')
    for q in range(2, 16, 2):
        A(f'v_fmac_f32 v5, v{32+q}, v{32+q}'); A(f'v_fmac_f32 v6, v{33+q}, v{33+q}')
    A('v_add_f32 v5, v5, v6')
    reduce(0, 0, 5)
    A('v_mul_f32 v5, 0x3a800000, v5')
    A('v_cvt_pk_bf16_f32 v6, v4, v5')
    A('v_lshlrev_b32 v4, 16, v6')
    A('v_and_b32 v5, s39, v6')
    A('v_add_f32 v5, 0x3727c5ac, v5')
    A('v_cvt_pk_bf16_f32 v5, v5, v5')
    A('v_and_b32 v5, s39, v5')
    A('v_sqrt_f32 v5, v5')
    A('s_nop 0')
    A('v_cvt_pk_bf16_f32 v5, v5, v5')
    A('v_and_b32 v5, s39, v5')
    A('v_rcp_f32 v6, v5')
    A('s_nop 0')
    A('v_fma_f32 v7, -v5, v6, 1.0')
    A('v_fmac_f32 v6, v7, v6')
    for q in range(16): A(f'v_sub_f32 v{32+q}, v{16+q}, v4')
    for q in range(8): A(f'v_cvt_pk_bf16_f32 v{8+q}, v{32+2*q}, v{33+2*q}')
    for q in range(8):
        A(f'v_lshlrev_b32 v{16+2*q}, 16, v{8+q}')
        A(f'v_and_b32 v{17+2*q}, s39, v{8+q}')
    for q in range(16): A(f'v_mul_f32 v{32+q}, v{16+q}, v6')
    for q in range(16): A(f'v_fma_f32 v{16+q}, -v{32+q}, v5, v{16+q}')
    for q in range(16): A(f'v_fmac_f32 v{32+q}, v{16+q}, v6')
    for q in range(8): A(f'v_cvt_pk_bf16_f32 v{8+q}, v{32+2*q}, v{33+2*q}')
    A('s_lshr_b32 s26, s25, 19')
    A('s_lshl_b32 s26, s26, 19')
    A('s_bfe_u32 s3, s25, 0x8000b')
    A('s_lshl_b32 s29, s3, 7')
    A('s_add_u32 s26, s26, s29')
    A('s_bfe_u32 s3, s3, 0x30001')
    A('v_and_b32 v7, 7, v2')
    A('v_xor_b32 v7, s3, v7')
    A('v_lshlrev_b32 v7, 4, v7')
    A('v_lshrrev_b32 v16, 3, v2')
    A('v_lshl_add_u32 v7, v16, 15, v7')
    A('s_add_u32 s29, s26, 262144')
    A('buffer_store_dwordx4 v[8:11], v7, s[16:19], s26 offen')
    A('buffer_store_dwordx4 v[12:15], v7, s[16:19], s29 offen')
    A('s_lshl_b32 s3, s24, 11')
    A('v_add_u32 v7, s3, v3')
    A('ds_write_b128 v7, v[8:11]')
    A('ds_write_b128 v7, v[12:15] offset:1024')
    A('s_and_b32 s3, s2, 511')
    A('s_cmp_eq_u32 s3, 0')
    A('s_cselect_b32 s27, 0.5, 1.0')
    A('s_waitcnt lgkmcnt(0)')
    A('s_barrier')
    def fold(last):
        A('v_lshlrev_b32 v41, 1, v40')
        A('v_sub_u32 v42, 2048, v41')
        A('v_and_b32 v42, 2047, v42')
        A('v_sub_u32 v43, 1024, v41')
        A('v_add_u32 v44, 1024, v41')
        if last:
            A('v_min_u32 v41, 512, v41'); A('v_max_u32 v42, 1536, v42'); A('v_max_i32 v43, 512, v43'); A('v_min_u32 v44, 1536, v44')
        for c in range(4):
            for r in range(4):
                A(f'ds_read_u16_d16_hi v{48+4*c+r}, v{41+c} offset:{r*2048}')
        A('s_waitcnt lgkmcnt(0)')
        for c in range(4):
            b = 48 + 4*c
            for r in range(4): A(f'v_and_b32 v{b+r}, s39, v{b+r}')
            A(f'v_add_f32 v64, v{b}, v{b+1}')
            A(f'v_sub_f32 v65, v{b}, v{b+1}')
            A(f'v_add_f32 v66, v{b+2}, v{b+3}')
            A(f'v_sub_f32 v67, v{b+2}, v{b+3}')
            A(f'v_add_f32 v{b}, v64, v66')
            A(f'v_sub_f32 v{b+1}, v64, v66')
            A(f'v_sub_f32 v{b+2}, v65, v67')
            A(f'v_add_f32 v{b+3}, v65, v67')
        A('v_and_b32 v45, 255, v40')
        A('v_cmp_eq_u32 vcc, 0, v45')
        A('v_mov_b32 v45, s27')
        A('v_mul_f32 v46, 0.5, v45')
        A('v_cndmask_b32 v45, v45, v46, vcc')
        if last:
            A('v_cmp_ge_u32 vcc, 256, v40')
        A('v_lshlrev_b32 v41, 1, v40')
        for k in range(4):
            c0, c1, c2, c3 = 48+k, 52+k, 56+k, 60+k
            if k < 2:
                A(f'v_add_f32 v64, v{c0}, v{c1}'); A(f'v_add_f32 v65, v{c2}, v{c3}')
                A('v_add_f32 v66, v64, v65'); A('v_sub_f32 v67, v64, v65')
            else:
                A(f'v_sub_f32 v64, v{c0}, v{c1}'); A(f'v_sub_f32 v65, v{c2}, v{c3}')
                A('v_sub_f32 v66, v64, v65'); A('v_add_f32 v67, v64, v65')
            A('v_mul_f32 v66, v66, v45'); A('v_mul_f32 v67, v67, v45')
            A(f'v_cvt_pk_bf16_f32 v{68+k}, v66, v67')
            if last:
                A(f'v_cndmask_b32 v{68+k}, 0, v{68+k}, vcc')
            A(f's_add_u32 s3, s28, {k*XPLANE}')
            A(f'buffer_store_short v{68+k}, v41, s[20:23], s3 offen')
            A(f'buffer_store_short_d16_hi v{68+k}, v41, s[20:23], s3 offen offset:576')
    A('v_mov_b32 v40, v0')
    fold(False)
    A('s_cmp_lg_u32 s24, 0')
    A(f's_cbranch_scc1 {name}_done')
    A('v_add_u32 v40, 256, v0')
    A('s_mov_b32 exec_hi, 0')
    fold(True)
    A('s_endpgm')
    A(f'{name}_zero:')
    A('v_mov_b32 v8, 0'); A('v_mov_b32 v9, 0'); A('v_mov_b32 v10, 0'); A('v_mov_b32 v11, 0')
    A(f's_mul_i32 s3, s24, {XPLANE}')
    A('s_add_u32 s3, s3, s28')
    A('v_lshlrev_b32 v3, 4, v2')
    A('buffer_store_dwordx4 v[8:11], v3, s[20:23], s3 offen')
    A(f's_add_u32 s12, s4, {34 << 20}')
    A('s_addc_u32 s13, s5, 0')
    A('s_mov_b32 s14, 2048')
    A('s_mov_b32 s15, 0x00020000')
    A('s_lshl_b32 s25, s24, 10')
    A('buffer_store_dwordx4 v[8:11], v3, s[12:15], s25 offen')
    A('s_mov_b64 exec, 0xff')
    A('buffer_store_dwordx4 v[8:11], v3, s[20:23], s3 offen offset:1024')
    A('s_endpgm')
    if nt:
        A(f'{name}_touch:')
        A('s_load_dwordx4 s[8:11], s[0:1], 48')
        A('v_lshrrev_b32 v1, 6, v0')
        A('v_and_b32 v2, 63, v0')
        A('v_readfirstlane_b32 s24, v1')
        A('v_lshlrev_b32 v3, 10, v2')
        A('s_lshl_b32 s25, s2, 2')
        A('s_add_u32 s25, s25, s24')
        A('s_waitcnt lgkmcnt(0)')
        A('s_and_b32 s26, s25, 1')
        A('s_cselect_b32 s16, s10, s8')
        A('s_cselect_b32 s17, s11, s9')
        A(f's_mov_b32 s18, {3584*2048}')
        A('s_mov_b32 s19, 0x00020000')
        A('s_lshr_b32 s25, s25, 1')
        A('s_lshl_b32 s25, s25, 16')
        for k, o in enumerate(opt.get('toffs', [384, 448])):
            A(f'buffer_load_dword v{8+k}, v3, s[16:19], s25 offen offset:{o}')
        A('s_endpgm')
    A(f'{name}_pack:')
    A('s_load_dwordx8 s[8:15], s[0:1], 8')
    A('s_sub_u32 s25, s2, 544')
    A('v_and_b32 v3, 15, v2')
    A('v_lshrrev_b32 v4, 4, v2')
    A('v_lshlrev_b32 v5, 4, v2')
    A('s_cmp_ge_u32 s25, 140')
    A(f's_cbranch_scc1 {name}_packd')
    A('s_mul_i32 s26, s25, 52429')
    A('s_lshr_b32 s26, s26, 18')
    A('s_mul_i32 s27, s26, 5')
    A('s_sub_u32 s27, s25, s27')
    A('s_mul_i32 s28, s26, 9363')
    A('s_lshr_b32 s28, s28, 16')
    A('s_mul_i32 s29, s28, 7')
    A('s_sub_u32 s29, s26, s29')
    A('s_mul_i32 s29, s29, 160')
    A('s_lshl_b32 s30, s27, 5')
    A('s_add_u32 s29, s29, s30')
    A('s_and_b32 s30, s28, 1')
    A('s_add_u32 s29, s29, s30')
    A('s_lshl_b32 s29, s29, 12')
    A('s_lshl_b32 s30, s24, 6')
    A('s_add_u32 s29, s29, s30')
    A('v_lshlrev_b32 v6, 13, v3')
    A('v_lshl_add_u32 v6, v4, 4, v6')
    A('s_mul_i32 s26, s26, 85')
    A('s_add_u32 s26, s26, s27')
    A('s_mul_i32 s30, s24, 5')
    A('s_add_u32 s26, s26, s30')
    A('s_lshl_b32 s26, s26, 10')
    A('s_waitcnt lgkmcnt(0)')
    A('s_cmp_lt_u32 s28, 2')
    A('s_cselect_b32 s16, s8, s10')
    A('s_cselect_b32 s17, s9, s11')
    A(f's_mov_b32 s18, {2048*4096}')
    A('s_mov_b32 s19, 0x00020000')
    A(f's_add_u32 s20, s4, {WS_MS}')
    A('s_addc_u32 s21, s5, 0')
    A(f's_mov_b32 s22, {2380*1024}')
    A('s_mov_b32 s23, 0x00020000')
    for k in range(5):
        A(f'buffer_load_dwordx4 {vr(8+4*k,4)}, v6, s[16:19], s29 offen offset:{256*k}')
    for k in range(5):
        if k == 4:
            A('s_cmp_lg_u32 s24, 0')
            A(f's_cbranch_scc1 {name}_done')
        A(f's_waitcnt vmcnt(4)')
        A(f'buffer_store_dwordx4 {vr(8+4*k,4)}, v5, s[20:23], s26 offen')
        A(f's_add_u32 s26, s26, {20*1024}')
    A('s_endpgm')
    A(f'{name}_packd:')
    A('s_sub_u32 s25, s25, 140')
    A('s_mul_i32 s26, s25, 52429')
    A('s_lshr_b32 s26, s26, 19')
    A('s_mul_i32 s27, s26, 10')
    A('s_sub_u32 s27, s25, s27')
    A('s_and_b32 s28, s26, 3')
    A('s_mul_i32 s29, s28, 160')
    A('s_lshr_b32 s30, s27, 1')
    A('s_lshl_b32 s30, s30, 5')
    A('s_add_u32 s29, s29, s30')
    A('s_and_b32 s30, s27, 1')
    A('s_add_u32 s29, s29, s30')
    A('s_lshl_b32 s29, s29, 11')
    A('s_lshl_b32 s30, s24, 6')
    A('s_add_u32 s29, s29, s30')
    A('v_lshlrev_b32 v6, 12, v3')
    A('v_lshl_add_u32 v6, v4, 4, v6')
    A('s_mul_i32 s31, s26, 90')
    A('s_add_u32 s31, s31, s27')
    A('s_mul_i32 s30, s24, 10')
    A('s_add_u32 s31, s31, s30')
    A('s_lshl_b32 s31, s31, 10')
    A('s_waitcnt lgkmcnt(0)')
    A('s_cmp_lt_u32 s26, 4')
    A('s_cselect_b32 s16, s12, s14')
    A('s_cselect_b32 s17, s13, s15')
    A(f's_mov_b32 s18, {1024*2048}')
    A('s_mov_b32 s19, 0x00020000')
    A(f's_add_u32 s20, s4, {WS_MD}')
    A('s_addc_u32 s21, s5, 0')
    A(f's_mov_b32 s22, {720*1024}')
    A('s_mov_b32 s23, 0x00020000')
    for k in range(3):
        A(f'buffer_load_dwordx4 {vr(8+4*k,4)}, v6, s[16:19], s29 offen offset:{256*k}')
    for k in range(3):
        if k == 2:
            A('s_cmp_lg_u32 s24, 0')
            A(f's_cbranch_scc1 {name}_done')
        A(f's_waitcnt vmcnt(2)')
        A(f'buffer_store_dwordx4 {vr(8+4*k,4)}, v5, s[20:23], s31 offen')
        A(f's_add_u32 s31, s31, {40*1024}')
    A(f'{name}_done:')
    A('s_endpgm')
    A(kd(name, 72, 48, 72))

if __name__ == '__main__':
    import sys, json
    A = Asm()
    A('; @launch kernel=k0_kernel grid=(544,1,1) block=(256,1,1) lds=8192')
    A('.amdgcn_target "amdgcn-amd-amdhsa--gfx950"')
    gen_k0(A, 'k0_kernel', {})
    open(sys.argv[1], 'w').write(A.text())
```

```python
from asmlib import *
import dft as DFT
from dft import WS_PF, WS_QF, PSTR

WS_XN = 0
WS_H = 4 << 20
WS_FLAG = 34 << 20
WS_STAMP = 200 << 20
NWD = 20
ROT = 12

def stamp(A, i):
    A(f's_memtime s[{64+2*i}:{65+2*i}]')
    A(f's_memrealtime s[{80+2*i}:{81+2*i}]')
def stamp_out(A):
    A('s_waitcnt vmcnt(0) lgkmcnt(0)')
    A(f's_add_u32 s12, s4, {WS_STAMP}')
    A('s_addc_u32 s13, s5, 0')
    A('s_mov_b32 s14, 0x100000')
    A('s_mov_b32 s15, 0x00020000')
    A('s_lshl_b32 s3, s2, 2')
    A('s_add_u32 s3, s3, s24')
    A('s_lshl_b32 s3, s3, 7')
    for q in range(32): A(f'v_mov_b32 v{64+q}, s{64+q}')
    A('v_mov_b32 v2, s3')
    A('s_mov_b64 exec, 1')
    for q in range(8):
        A(f'buffer_store_dwordx4 v[{64+4*q}:{67+4*q}], v2, s[12:15], 0 offen offset:{16*q}')

def emit_ops(A, L):
    for pre, ins in L:
        for q in pre: A(q)
        if pre: A('s_nop 0')
        A(ins)

def wd_dma():
    return [(['s_mov_b32 m0, s55'], 'buffer_load_dwordx4 v40, s[40:43], s54 offen lds'),
            ([], 'buffer_load_dwordx4 v41, s[40:43], s54 offen offset:1024 lds')]
WD_ADV = [f's_add_u32 s54, s54, {64*2048}', 's_add_u32 s55, s55, 8192', f's_cmp_ge_u32 s55, {NWD*8192}', f's_cselect_b32 s3, {NWD*8192}, 0', 's_sub_u32 s55, s55, s3']

def gen_g3(A, name, opt):
    st = opt.get('stamp', False)
    A('s_lshr_b32 s25, s27, 1')
    A('s_and_b32 s26, s27, 1')
    A('s_cmp_ge_u32 s3, 24')
    A(f's_cbranch_scc1 {name}_shr')
    A('s_mul_i32 s28, s25, 6')
    A('s_mul_i32 s26, s26, 3')
    A('s_add_u32 s28, s28, s26')
    A('s_lshr_b32 s26, s3, 3')
    A('s_add_u32 s28, s28, s26')
    A('s_mul_i32 s26, s28, 43')
    A('s_lshr_b32 s26, s26, 7')
    A('s_add_u32 s26, s26, 1')
    A('s_min_u32 s26, s26, 4')
    A('s_add_u32 s26, s26, s28')
    A('s_and_b32 s25, s3, 7')
    A(f's_branch {name}_mapd')
    A(f'{name}_shr:')
    A('s_lshl_b32 s28, s26, 2')
    A('s_lshl_b32 s26, s25, 2')
    A('s_add_u32 s25, s28, s3')
    A('s_sub_u32 s25, s25, 24')
    A(f'{name}_mapd:')
    A('v_lshlrev_b32 v8, 4, v1')
    A('s_lshl_b32 s3, s24, 13')
    A('v_add_u32 v8, s3, v8')
    A('v_add_u32 v9, 4096, v8')
    A('v_lshrrev_b32 v3, 4, v1')
    A('s_and_b32 s3, s24, 1')
    A('s_lshl_b32 s3, s3, 5')
    A('v_add_u32 v2, s3, v3')
    A('v_mul_u32_u24 v2, 7168, v2')
    A('v_and_b32 v4, 15, v1')
    A('v_lshlrev_b32 v5, 1, v3')
    A('v_xor_b32 v4, v4, v5')
    A('v_xor_b32 v5, 8, v4')
    A('v_lshl_add_u32 v4, v4, 4, v2')
    A('v_lshl_add_u32 v5, v5, 4, v2')
    for p in range(8):
        A(f'v_add_u32 v{16+p}, {p*4*7168 - (p&3)*1024}, v{4 + ((p>>1)&1)}')
    A('s_lshl_b32 s30, s24, 13')
    A('s_add_u32 s31, s30, 65536')
    A('s_mov_b32 s28, 0')
    A('s_mov_b32 s29, 0')
    A('s_waitcnt lgkmcnt(0)')
    A('s_lshl_b32 s3, s25, 19')
    A('s_add_u32 s12, s4, s3')
    A('s_addc_u32 s13, s5, 0')
    A(f's_mov_b32 s14, {256*2048}')
    A('s_mov_b32 s15, 0x00020000')
    A('s_cmp_ge_u32 s24, 2')
    A('s_cselect_b32 s16, s10, s8')
    A('s_cselect_b32 s17, s11, s9')
    A('s_lshl_b32 s3, s26, 8')
    A('s_add_u32 s16, s16, s3')
    A('s_addc_u32 s17, s17, 0')
    A(f's_sub_u32 s18, {1024*7168}, s3')
    A('s_mov_b32 s19, 0x00020000')
    FL = opt.get('wflag', ' nt')
    def dma_x():
        L = []
        for p in range(8):
            pre = ['s_mov_b32 m0, s30'] if p == 0 else (['s_add_u32 m0, s30, 4096'] if p == 4 else [])
            L.append((pre, f'buffer_load_dwordx4 v{8+(p>>2)}, s[12:15], s28 offen offset:{(p&3)*1024} lds'))
        return L
    def dma_w():
        L = []
        for p in range(8):
            pre = ['s_mov_b32 m0, s31'] if p == 0 else (['s_add_u32 m0, s31, 4096'] if p == 4 else [])
            L.append((pre, f'buffer_load_dwordx4 v{16+p}, s[16:19], s29 offen offset:{(p&3)*1024}{FL} lds'))
        return L
    adv_x = ['s_add_u32 s28, s28, 32768', 's_xor_b32 s30, s30, 0x8000']
    adv_w = [f's_add_u32 s29, s29, {64*7168}', 's_add_u32 s31, s31, 0x8000',
             f's_cmp_ge_u32 s31, {163840}', f's_cselect_b32 s3, {98304}, 0', 's_sub_u32 s31, s31, s3']
    for L, av in ((dma_w(), adv_w), (dma_x(), adv_x), (dma_x(), adv_x), (dma_w(), adv_w), (dma_w(), adv_w)):
        emit_ops(A, L)
        for q in av: A(q)
    common_setup(A, name, opt)
    A('s_lshl_b32 s20, s25, 1')
    A('s_and_b32 s3, s24, 1')
    A('s_add_u32 s20, s20, s3')
    A('s_mul_i32 s20, s20, 56')
    A('s_lshl_b32 s3, s26, 1')
    A('s_add_u32 s20, s20, s3')
    A('s_lshr_b32 s3, s24, 1')
    A('s_add_u32 s20, s20, s3')
    A('s_lshl_b32 s20, s20, 14')
    A(f's_add_u32 s20, s20, {WS_H}')
    A('s_add_u32 s20, s20, s4')
    A('s_addc_u32 s21, s5, 0')
    A('s_mov_b32 s22, 16384')
    A('s_mov_b32 s23, 0x00020000')
    A('s_mul_i32 s56, s25, 28')
    A('s_add_u32 s56, s56, s26')
    A('s_and_b32 s58, s56, 3')
    A('s_add_u32 s58, s58, 1')
    A('s_lshl_b32 s56, s56, 2')
    A('s_add_u32 s56, s56, s24')
    A('s_lshl_b32 s56, s56, 13')
    A('s_add_u32 s57, s56, 4096')
    A('v_lshlrev_b32 v36, 6, v1')
    A('s_lshl_b32 s59, s25, 5')
    A('s_add_u32 s59, s59, s26')
    A('s_lshl_b32 s59, s59, 2')
    A('s_and_b32 s3, s24, 1')
    A('s_lshl_b32 s3, s3, 7')
    A('v_and_b32 v2, 15, v1')
    A('v_add_u32 v2, s3, v2')
    A('v_lshlrev_b32 v2, 7, v2')
    A('v_lshrrev_b32 v3, 4, v1')
    A('v_bfe_u32 v4, v1, 1, 3')
    A('v_xor_b32 v3, v3, v4')
    for kk in range(2):
        A(f'v_xor_b32 v4, {4*kk}, v3')
        A(f'v_lshl_add_u32 v{24+kk}, v4, 4, v2')
        A(f'v_add_u32 v{26+kk}, 0x8000, v{24+kk}')
    A('v_lshrrev_b32 v2, 4, v1')
    A('v_bfe_u32 v3, v1, 2, 2')
    A('v_lshl_add_u32 v2, v2, 3, v3')
    A('v_lshlrev_b32 v2, 8, v2')
    A('v_and_b32 v4, 3, v1')
    A('v_lshl_add_u32 v2, v4, 3, v2')
    A('v_bfe_u32 v4, v1, 4, 1')
    A('v_lshl_add_u32 v3, v4, 2, v3')
    A('s_lshr_b32 s3, s24, 1')
    A('s_lshl_b32 s3, s3, 2')
    A('v_xor_b32 v3, s3, v3')
    A('s_mov_b32 s33, 65536')
    for i in range(4):
        A(f'v_xor_b32 v4, {i}, v3')
        A(f'v_lshl_add_u32 v{32+i}, v4, 5, v2')
        A(f'v_add_u32 v{28+i}, s33, v{32+i}')

    def wf(i, kk): return 64 + (i*2 + kk)*4
    def xf(b, j, kk): return 128 + 64*b + (j*2 + kk)*4
    def acc(i, j): return ar((i*8 + j)*4, 4)
    def mm(b, i, j, kk, zero=False):
        return f'v_mfma_f32_16x16x32_bf16 {acc(i,j)}, {vr(wf(i,kk),4)}, {vr(xf(b,j,kk),4)}, {0 if zero else acc(i,j)}'
    def rw(i):
        L = []
        for kk in range(2):
            off = (i >> 2)*16384 + kk*8192
            L += [f'ds_read_b64_tr_b16 {vr(wf(i,kk),2)}, v{28+(i&3)} offset:{off}', f'ds_read_b64_tr_b16 {vr(wf(i,kk)+2,2)}, v{28+(i&3)} offset:{off+1024}']
        return L
    def rx(b):
        return [f'ds_read_b128 {vr(xf(b,j,kk),4)}, v{24+2*b+kk} offset:{j*2048}' for j in range(8) for kk in range(2)]
    rot_w = ['s_add_u32 s33, s33, 0x8000', 's_cmp_ge_u32 s33, 163840', 's_cselect_b32 s33, 65536, s33'] + [f'v_add_u32 v{28+q}, s33, v{32+q}' for q in range(4)]
    A('s_waitcnt vmcnt(24)')
    A('s_barrier')
    for r in rw(0) + rx(0): A(r)
    for i in range(1, 8):
        for r in rw(i): A(r)
    if st: stamp(A, 1)

    BAR = opt.get('bar', 13)
    def body(t, kind):
        b = t & 1
        F = {}
        def add(s, ins): F.setdefault(s, []).append(ins)
        A('s_waitcnt lgkmcnt(0)')
        if kind != 'first':
            for n, r in enumerate(rw(7)): add(n, r)
        for n, q in enumerate(rot_w): add(4 + n, q)
        add(BAR, f's_waitcnt lgkmcnt(0) vmcnt({0 if kind == "none" else 8})')
        add(BAR, 's_barrier')
        for i in range(7):
            for n, r in enumerate(rw(i)): add(16*(i + 1) + 2*n, r)
        for n, r in enumerate(rx(b ^ 1)): add(16*(1 + n//3) + 8 + 2*(n % 3), r)
        s = opt.get('dma0', 17)
        if kind == 'none':
            ops = [(wd_dma(), WD_ADV) for _ in range(12)]
        else:
            ops = [(dma_x(), adv_x)] + ([(dma_w(), adv_w)] if kind != 'xonly' else [])
        step = opt.get('dstep', 4) if kind != 'none' else 4
        for L, av in ops:
            for pre, ins in L:
                for q in pre: add(s - 2, q)
                add(s, ins); s += step
            for q in av: add(s - step + 1, q)
        if kind == 'full' and b == 0 and opt.get('wdtouch', True):
            add(BAR + 1, 's_cmp_lg_u32 s32, s58')
            add(BAR + 1, f's_cbranch_scc1 {name}_nt')
            add(BAR + 1, 'buffer_load_dword v37, v36, s[44:47], s56 offen')
            add(BAR + 1, 'buffer_load_dword v38, v36, s[44:47], s57 offen')
            add(BAR + 1, f'{name}_nt:')
        M = [mm(b, i, j, kk, kind == 'first' and kk == 0) for i in range(8) for j in range(8) for kk in range(2)]
        interleave(A, M, F)
    body(0, 'first')
    A('s_mov_b32 s32, 0')
    A('.p2align 6')
    A(f'{name}_loop:')
    body(1, 'full')
    body(2, 'full')
    A('s_add_u32 s32, s32, 1')
    A('s_cmp_lt_u32 s32, 6')
    A(f's_cbranch_scc1 {name}_loop')
    body(13, 'xonly')
    body(14, 'none')
    if st: stamp(A, 2)
    A('s_waitcnt lgkmcnt(0)')
    F = {}
    def add(s, ins): F.setdefault(s, []).append(ins)
    for r in rw(7): add(-1, r)
    add(12, 's_waitcnt lgkmcnt(0)')
    add(13, 's_barrier')
    add(0, 's_mov_b32 s34, 0')
    def conv(j):
        L = []
        for ip in (0, 2):
            o = 128 + (((2*j + ip//2)) & 1)*24
            for t in range(2):
                g0 = ((ip + t)*8 + j)*4; u0 = ((4 + ip + t)*8 + j)*4
                for r in range(4):
                    L.append(f'v_accvgpr_read_b32 v{o+8+t*4+r}, a{g0+r}')
                    L.append(f'v_accvgpr_read_b32 v{o+16+t*4+r}, a{u0+r}')
            for r in range(0, 8, 2):
                L.append(f'v_pk_mul_f32 {vr(o+8+r,2)}, {vr(o+8+r,2)}, {vr(o+16+r,2)}')
            for r in range(0, 8, 2):
                L.append(f'v_cvt_pk_bf16_f32 v{o+r//2}, v{o+8+r}, v{o+8+r+1}')
            L.append(f'buffer_store_dwordx4 {vr(o,4)}, v42, s[20:23], s34 offen offset:{(j & 1)*2048 + (ip >> 1)*1024} sc1')
        if j & 1: L.append('s_add_u32 s34, s34, 4096')
        return L
    for j in range(7):
        L = conv(j)
        for n, q in enumerate(L): add(16*(j + 1) + 3 + (n*13)//len(L), q)
    M = [mm(1, i, j, kk) for j in range(8) for i in (0, 4, 1, 5, 2, 6, 3, 7) for kk in range(2)]
    interleave(A, M, F)
    A('s_nop 7')
    for q in conv(7): A(q)
    for _ in range(NWD - 12):
        emit_ops(A, wd_dma())
        for q in WD_ADV: A(q)
    A(f's_waitcnt vmcnt({2*(NWD - 12)})')
    A('s_barrier')
    A('s_cmp_lg_u32 s24, 0')
    A(f's_cbranch_scc1 {name}_g4')
    A('v_mov_b32 v2, 1')
    A('v_mov_b32 v3, s59')
    A('s_mov_b64 exec, 1')
    A('buffer_store_dword v2, v3, s[48:51], 0 offen sc1')
    A('s_mov_b64 exec, -1')

def common_setup(A, name, opt):
    A('s_lshr_b32 s3, s2, 3')
    A('s_and_b32 s52, s27, 3')
    A('s_lshl_b32 s52, s52, 2')
    A('s_and_b32 s53, s3, 3')
    A('s_add_u32 s52, s52, s53')
    A('s_lshr_b32 s53, s27, 2')
    A('s_lshl_b32 s53, s53, 3')
    A('s_lshr_b32 s3, s3, 2')
    A('s_add_u32 s53, s53, s3')
    A('s_lshl_b32 s3, s53, 7')
    A('s_add_u32 s40, s44, s3')
    A('s_addc_u32 s41, s45, 0')
    A(f's_sub_u32 s42, {3584*2048}, s3')
    A('s_mov_b32 s43, 0x00020000')
    A(f's_mov_b32 s46, {3584*2048}')
    A('s_mov_b32 s47, 0x00020000')
    A(f's_add_u32 s48, s4, {WS_FLAG}')
    A('s_addc_u32 s49, s5, 0')
    A('s_mov_b32 s50, 2048')
    A('s_mov_b32 s51, 0x00020000')
    A('v_lshrrev_b32 v2, 3, v1')
    A('s_lshl_b32 s3, s24, 4')
    A('v_add_u32 v2, s3, v2')
    A('v_lshlrev_b32 v2, 11, v2')
    A('v_lshrrev_b32 v3, 4, v1')
    A('v_lshlrev_b32 v3, 1, v3')
    A('v_and_b32 v4, 7, v1')
    A('v_xor_b32 v4, v4, v3')
    A('v_lshl_add_u32 v40, v4, 4, v2')
    A(f'v_add_u32 v41, {8*2048 - 1024}, v40')
    A('s_lshl_b32 s55, s24, 11')
    A(f's_add_u32 s55, s55, {ROT*8192}')
    A('s_mov_b32 s54, 0')
    A('v_lshlrev_b32 v42, 4, v1')

def gen_g4(A, name, opt):
    st = opt.get('stamp', False)
    D = 8; NK = 56
    if st: stamp(A, 3)
    A(f's_mul_i32 s3, s52, {128*7168}')
    A(f's_add_u32 s3, s3, {WS_H}')
    A('s_add_u32 s12, s4, s3')
    A('s_addc_u32 s13, s5, 0')
    A(f's_mov_b32 s14, {128*7168}')
    A('s_mov_b32 s15, 0x00020000')
    A('s_lshl_b32 s3, s24, 12')
    A('v_add_u32 v8, s3, v42')
    A('s_mov_b32 s28, 0')
    A('v_lshrrev_b32 v2, 2, v1')
    A('v_lshlrev_b32 v2, 7, v2')
    A('v_and_b32 v4, 3, v1')
    A('v_lshl_add_u32 v2, v4, 3, v2')
    A('v_bfe_u32 v3, v1, 3, 2')
    A(f's_mov_b32 s33, {ROT*8192}')
    for i in range(4):
        A(f'v_xor_b32 v4, {i}, v3')
        A(f'v_lshl_add_u32 v{20+i}, v4, 5, v2')
        A(f'v_add_u32 v{16+i}, s33, v{20+i}')
    A('s_lshl_b32 s3, s24, 13')
    A('s_add_u32 s3, s3, 65536')
    A('v_and_b32 v2, 15, v1')
    A('v_lshlrev_b32 v2, 8, v2')
    A('v_add_u32 v2, s3, v2')
    A('v_lshrrev_b32 v3, 4, v1')
    A('v_and_b32 v4, 7, v1')
    A('v_xor_b32 v3, v3, v4')
    A('v_lshl_add_u32 v24, v3, 4, v2')
    A('v_xor_b32 v3, 4, v3')
    A('v_lshl_add_u32 v25, v3, 4, v2')
    A('v_lshrrev_b32 v5, 3, v1')
    A('v_lshlrev_b32 v2, 8, v5')
    A('v_add_u32 v2, s3, v2')
    A('v_lshlrev_b32 v3, 1, v4')
    A('v_xor_b32 v3, v3, v5')
    A('v_lshl_add_u32 v26, v3, 4, v2')
    A('v_xor_b32 v3, 1, v3')
    A('v_lshl_add_u32 v27, v3, 4, v2')
    A('s_lshl_b32 s3, s52, 7')
    A('s_lshl_b32 s35, s24, 5')
    A('s_add_u32 s3, s3, s35')
    A('v_add_u32 v5, s3, v5')
    A('s_lshl_b32 s3, s53, 7')
    A('v_lshlrev_b32 v3, 4, v4')
    A('v_add_u32 v3, s3, v3')
    A(f'v_sub_u32 v6, {2048 - 14}, v3')
    A('s_cmp_ge_u32 s53, 8')
    A('s_cselect_b64 vcc, -1, 0')
    A('v_cndmask_b32 v6, v3, v6, vcc')
    A('v_lshl_add_u32 v28, v5, 11, v3')
    for p in range(4):
        A(f'v_add_u32 v4, {8*p}, v5')
        A('v_sub_u32 v7, 2048, v4')
        A('v_min_u32 v4, v4, v7')
        A(f'v_mul_u32_u24 v4, {PSTR}, v4')
        A(f'v_add_u32 v{30+p}, v4, v6')
    srd(A, 16, 6, 7, 4 << 20)
    srd(A, 8, 60, 61, 4 << 20)
    A(f's_add_u32 s20, s4, {WS_PF}')
    A('s_addc_u32 s21, s5, 0')
    A(f's_mov_b32 s22, {(WS_QF - WS_PF) + 1025*PSTR}')
    A('s_mov_b32 s23, 0x00020000')
    A(f's_mov_b32 s36, {WS_QF - WS_PF}')
    A('s_xor_b32 s3, s52, s53')
    A('s_and_b32 s3, s3, 8')
    A('s_cselect_b32 s56, 1.0, -1.0')
    A('s_mov_b32 s57, s56')
    A('s_mov_b32 s58, 0xbfb8aa3b')
    A('s_mov_b32 s59, s58')
    A('s_mov_b32 s39, 0xffff0000')
    A('v_lshlrev_b32 v9, 2, v1')
    A('s_lshr_b32 s34, s52, 1')
    A('s_lshl_b32 s34, s34, 7')
    def poll(off, tag):
        A('s_mov_b32 s35, 0')
        A(f'{name}_poll{tag}:')
        A(f'buffer_load_dword v10, v9, s[48:51], {off} offen sc1')
        A('s_waitcnt vmcnt(0)')
        A('v_cmp_eq_u32 vcc, 1, v10')
        A('s_add_u32 s35, s35, 1')
        A('s_nop 2')
        A('s_and_b32 s3, vcc_lo, 0x0fffffff')
        A('s_cmp_eq_u32 s3, 0x0fffffff')
        A(f's_cbranch_scc1 {name}_go{tag}')
        A(f's_sleep {opt.get("sleep", 4)}')
        A('s_cmp_lt_u32 s35, 0x40000')
        A(f's_cbranch_scc1 {name}_poll{tag}')
        A(f'{name}_go{tag}:')
    A('s_cmp_lg_u32 s24, 0')
    A(f's_cbranch_scc1 {name}_goh')
    poll('s34', 'h')
    A('s_waitcnt vmcnt(0)')
    A('s_barrier')
    if st: stamp(A, 4)
    HB = 128
    def hreg(t, j, kk): return HB + 16*(t % D) + (j*2 + kk)*4
    def hl(t): return [([], f'buffer_load_dwordx4 {vr(HB + 16*(t % D) + 4*q, 4)}, v8, s[12:15], s28 offen offset:{q*1024} sc1') for q in range(4)]
    HADV = ['s_add_u32 s28, s28, 16384']
    Q = []
    for t in range(D - 1):
        emit_ops(A, hl(t)); A(HADV[0]); Q += [('h', t)]*4
    FB = [64, 96]
    def wf(b, i, kk): return FB[b] + (i*2 + kk)*4
    def acc(i, j): return ar((i*2 + j)*4, 4)
    def reads(b):
        L = []
        for i in range(4):
            for kk in range(2):
                L += [f'ds_read_b64_tr_b16 {vr(wf(b,i,kk),2)}, v{16+i} offset:{kk*4096}', f'ds_read_b64_tr_b16 {vr(wf(b,i,kk)+2,2)}, v{16+i} offset:{kk*4096+2048}']
        return L
    rot = ['s_add_u32 s33, s33, 8192', f's_cmp_eq_u32 s33, {NWD*8192}', 's_cselect_b32 s33, 0, s33'] + [f'v_add_u32 v{16+q}, s33, v{20+q}' for q in range(4)]
    for r in reads(0): A(r)
    for q in rot: A(q)
    E0 = HB
    def epi_loads():
        L = []
        for p in range(4):
            L.append(([f's_mov_b32 s3, {p*16384}'], f'buffer_load_dwordx4 {vr(E0+12*p,4)}, v28, s[16:19], s3 offen'))
            L.append(([], f'buffer_load_dwordx4 {vr(E0+12*p+4,4)}, v{30+p}, s[20:23], 0 offen sc1'))
            L.append(([], f'buffer_load_dwordx4 {vr(E0+12*p+8,4)}, v{30+p}, s[20:23], s36 offen sc1'))
        return L
    def need(tags):
        last = max(i for i, x in enumerate(Q) if x in tags) if any(x in tags for x in Q) else -1
        return len(Q) - 1 - last
    def body(t, expect=None):
        F = {}
        def add(s, ins): F.setdefault(s, []).append(ins)
        n = need({('h', t), ('w', t + 1)})
        if expect is not None: assert n == expect, (t, n)
        A(f's_waitcnt lgkmcnt(0) vmcnt({min(n, 63)})')
        if t + 1 < NK:
            add(0, 's_barrier')
            for k, r in enumerate(reads((t + 1) & 1)): add(min(k, 14), r)
            for q in rot: add(15, q)
        ops = []
        if t < 40: ops += [(o, ('w', t + NWD)) for o in wd_dma()]
        if t + D - 1 < NK: ops += [(o, ('h', t + D - 1)) for o in hl(t + D - 1)]
        sl = [1, 4, 6, 9, 11, 14] if len(ops) == 6 else [1, 5, 9, 13]
        for ((pre, ins), tag), s in zip(ops, sl):
            for q in pre: add(s - 1, q)
            add(s, ins); Q.append(tag)
        if t < 40:
            for k, q in enumerate(WD_ADV): add(5 + k, q)
        if t + D - 1 < NK: add(15, HADV[0])
        if t == 49:
            add(2, 'buffer_load_dword v10, v9, s[48:51], 0 offen offset:1024 sc1'); Q.append(('f', 0))
        M = [f'v_mfma_f32_16x16x32_bf16 {acc(i,j)}, {vr(wf(t&1,i,kk),4)}, {vr(hreg(t,j,kk),4)}, {acc(i,j) if (t or kk) else 0}' for i in range(4) for j in range(2) for kk in range(2)]
        interleave(A, M, F)
        if t == 51:
            A(f's_waitcnt vmcnt({need({("f", 0)})})')
            A('v_cmp_eq_u32 vcc, 1, v10')
            A('s_nop 3')
            A('s_and_b32 s3, vcc_lo, 0x0fffffff')
            A('s_cmp_eq_u32 s3, 0x0fffffff')
            A(f's_cbranch_scc1 {name}_gopq')
            A('s_movk_i32 s34, 1024')
            poll('s34', 'pq')
            emit_ops(A, epi_loads())
            for p in range(4): Q.extend([('e', p)]*3)
    for t in range(8): body(t)
    A('s_mov_b32 s32, 0')
    A('.p2align 6')
    A(f'{name}_loop4:')
    for t in range(8, 16): body(t, 36)
    A('s_add_u32 s32, s32, 1')
    A('s_cmp_lt_u32 s32, 4')
    A(f's_cbranch_scc1 {name}_loop4')
    Q = [(k, n + 24) for k, n in Q]
    for t in range(40, NK): body(t)
    if st: stamp(A, 5)
    A('s_nop 7')
    for i in range(4):
        for j in range(2):
            A(f'ds_write_b128 v{24 + (i & 1)}, {acc(i,j)} offset:{(i >> 1)*128 + j*4096}')
    A('s_waitcnt lgkmcnt(0)')
    for p in range(4):
        A(f'ds_read_b128 {vr(64+8*p,4)}, v26 offset:{p*2048}')
        A(f'ds_read_b128 {vr(68+8*p,4)}, v27 offset:{p*2048}')
    A('s_cmp_ge_u32 s53, 8')
    A(f's_cbranch_scc1 {name}_fin1')
    for mir in range(2):
        if mir: A(f'{name}_fin1:')
        for p in range(4):
            Z = 64 + 8*p; T = 96; X = E0 + 12*p; P = X + 4; Qr = X + 8
            A(f's_waitcnt lgkmcnt({6 - 2*p})')
            for q in range(4): A(f'v_pk_mul_f32 {vr(T+2*q,2)}, {vr(Z+2*q,2)}, s[58:59]')
            for e in range(8): A(f'v_exp_f32 v{T+e}, v{T+e}')
            A(f's_waitcnt vmcnt({3*(3 - p) + p})')
            for q in range(4):
                lo, hi = (2*q, 2*q + 1) if not mir else (7 - 2*q, 6 - 2*q)
                A(f'v_lshlrev_b32 v{T+8+lo}, 16, v{P+q}')
                A(f'v_and_b32 v{T+8+hi}, s39, v{P+q}')
                A(f'v_lshlrev_b32 v{T+16+lo}, 16, v{Qr+q}')
                A(f'v_and_b32 v{T+16+hi}, s39, v{Qr+q}')
            for q in range(4): A(f'v_pk_add_f32 {vr(T+2*q,2)}, {vr(T+2*q,2)}, 1.0 op_sel_hi:[1,0]')
            for e in range(8): A(f'v_rcp_f32 v{T+e}, v{T+e}')
            for q in range(4): A(f'v_pk_fma_f32 {vr(T+8+2*q,2)}, {vr(T+16+2*q,2)}, s[56:57], {vr(T+8+2*q,2)}')
            for q in range(4):
                A(f'v_lshlrev_b32 v{T+16+2*q}, 16, v{X+q}')
                A(f'v_and_b32 v{T+16+2*q+1}, s39, v{X+q}')
            for q in range(4): A(f'v_pk_mul_f32 {vr(T+2*q,2)}, {vr(T+2*q,2)}, {vr(Z+2*q,2)}')
            for q in range(4): A(f'v_pk_fma_f32 {vr(T+2*q,2)}, {vr(T+2*q,2)}, {vr(T+8+2*q,2)}, {vr(T+16+2*q,2)}')
            for q in range(4): A(f'v_cvt_pk_bf16_f32 v{X+q}, v{T+2*q}, v{T+2*q+1}')
            A(f's_mov_b32 s3, {p*16384}')
            A(f'buffer_store_dwordx4 {vr(X,4)}, v28, s[8:11], s3 offen')
        if not mir: A(f's_branch {name}_fin')
    A(f'{name}_fin:')
    if st:
        A('s_waitcnt vmcnt(0)')
        stamp(A, 6)
        stamp_out(A)

def gen_km(A, name, opt):
    st = opt.get('stamp', False)
    A(head(name))
    A('s_cmp_ge_u32 s2, 256')
    A(f's_cbranch_scc1 {name}_done')
    if st: stamp(A, 0)
    A('s_load_dwordx2 s[4:5], s[0:1], 88')
    A('s_load_dwordx4 s[8:11], s[0:1], 48')
    A('s_load_dwordx2 s[44:45], s[0:1], 64')
    A('s_load_dwordx2 s[60:61], s[0:1], 72')
    A('s_load_dwordx2 s[6:7], s[0:1], 0')
    A('v_lshrrev_b32 v1, 6, v0')
    A('s_and_b32 s27, s2, 7')
    A('v_readfirstlane_b32 s24, v1')
    A('s_lshr_b32 s3, s2, 3')
    A('v_and_b32 v1, 63, v0')
    A('s_cmp_ge_u32 s3, 28')
    A(f's_cbranch_scc1 {name}_dft')
    gen_g3(A, name, opt)
    A(f'{name}_g4:')
    gen_g4(A, name, opt)
    A('s_endpgm')
    A(f'{name}_dft:')
    A('s_waitcnt lgkmcnt(0)')
    common_setup(A, name, opt)
    A('s_lshr_b32 s3, s2, 3')
    DFT.stamp = stamp
    DFT.gen_dft(A, name, dict(opt, sc1=True))
    A('s_barrier')
    for _ in range(NWD):
        emit_ops(A, wd_dma())
        for q in WD_ADV: A(q)
    A(f's_waitcnt vmcnt({2*NWD})')
    A('s_barrier')
    A('s_cmp_lg_u32 s24, 0')
    A(f's_cbranch_scc1 {name}_g4')
    A('s_mul_i32 s3, s25, 7')
    A('s_add_u32 s3, s3, s26')
    A('s_lshl_b32 s3, s3, 2')
    A('v_mov_b32 v2, 1')
    A('v_mov_b32 v3, s3')
    A('s_mov_b64 exec, 1')
    A('buffer_store_dword v2, v3, s[48:51], 0 offen offset:1024 sc1')
    A('s_mov_b64 exec, -1')
    A(f's_branch {name}_g4')
    A(f'{name}_spare:')
    if opt.get('spf', 0):
        A('s_lshr_b32 s25, s27, 1')
        A('s_lshl_b32 s25, s25, 2')
        A('s_add_u32 s25, s25, s24')
        A('s_lshl_b32 s25, s25, 16')
        A(f's_add_u32 s25, s25, {opt.get("spfoff", 384)}')
        A('v_lshlrev_b32 v2, 10, v1')
        A('s_mov_b32 s12, s8'); A('s_mov_b32 s13, s9'); A(f's_mov_b32 s14, {1024*7168}'); A('s_mov_b32 s15, 0x00020000')
        A('s_mov_b32 s16, s10'); A('s_mov_b32 s17, s11'); A(f's_mov_b32 s18, {1024*7168}'); A('s_mov_b32 s19, 0x00020000')
        for k in range(7):
            A(f'buffer_load_dword v{8+2*k}, v2, s[12:15], s25 offen')
            A(f'buffer_load_dword v{9+2*k}, v2, s[16:19], s25 offen')
            A(f's_add_u32 s25, s25, {1 << 20}')
    for _ in range(NWD):
        emit_ops(A, wd_dma())
        for q in WD_ADV: A(q)
    A(f's_branch {name}_g4')
    A(f'{name}_done:')
    A('s_endpgm')
    A(kd(name, 512, 100, 256))
```

```python
import sys, json
from asmlib import *
from k0 import gen_k0, NWG0
from km import gen_km
HDR = open('recurrent_scan__spectral_fnet__glu_gated_bilinear__prompt.s.ref').read().split('; Override')[0]
def build(path, opt):
    A = Asm()
    A(HDR)
    A(f'; @launch kernel=k0_kernel grid=({NWG0 + opt.get("k0touch", 0)},1,1) block=(256,1,1) lds=8192')
    A('; @launch kernel=km_kernel grid=(256,1,1) block=(256,1,1) lds=163840')
    A('.amdgcn_target "amdgcn-amd-amdhsa--gfx950"')
    gen_k0(A, 'k0_kernel', opt)
    gen_km(A, 'km_kernel', opt)
    open(path, 'w').write(A.text())
if __name__ == '__main__':
    build(sys.argv[1], json.loads(sys.argv[2]) if len(sys.argv) > 2 else {})
```
